```python
import torch

def _softmax(x, axis=-1):
    return torch.softmax(x, dim=axis)
def _gelu(x):
    return torch.nn.functional.gelu(x, approximate="tanh")
def _silu(x):
    return torch.nn.functional.silu(x)
def _sigmoid(x):
    return torch.sigmoid(x)
def _layernorm(x, axis=-1, eps=1e-5):
    m = x.mean(dim=axis, keepdim=True)
    v = x.var(dim=axis, keepdim=True, unbiased=False)
    return (x - m) / torch.sqrt(v + eps)
def _scatter_add(tgt, idx, src, axis=0):
    return tgt.clone().index_add_(axis, idx, src)
def _segment_sum(src, seg, n):
    out = torch.zeros((n,) + src.shape[1:], dtype=src.dtype)
    return out.index_add_(0, seg, src)
def _pad(x, pw):
    flat = tuple(v for pair in reversed(pw) for v in pair)
    return torch.nn.functional.pad(x, flat)

kernel_name = 'parallel_sum__ssm_conv_s5__dense_activation_silu__prompt'

def setup_inputs():

    _w = (lambda a: (lambda t: t.to(torch.bfloat16) if t.is_floating_point() else t)(torch.as_tensor(a)))
    def _A_setup():
        B, S, D = 1, 2048, 576
        P = D
        Lambda_re = -0.5 * (lambda _x: torch.exp(torch.as_tensor(_x)))((lambda *s: torch.randn(*s, dtype=torch.bfloat16) * 0.2)(P))
        Lambda_im = (lambda *s: torch.randn(*s, dtype=torch.bfloat16) * 0.8)(P) * 1.0
        B_re = (lambda *s: torch.randn(*s, dtype=torch.bfloat16) * 0.2)(P, D) * (D ** -0.5)
        B_im = (lambda *s: torch.randn(*s, dtype=torch.bfloat16) * 0.2)(P, D) * (D ** -0.5)
        C_re = (lambda *s: torch.randn(*s, dtype=torch.bfloat16) * 0.2)(D, P) * (P ** -0.5)
        C_im = (lambda *s: torch.randn(*s, dtype=torch.bfloat16) * 0.2)(D, P) * (P ** -0.5)
        log_dt = (lambda *s: torch.randn(*s, dtype=torch.bfloat16) * 0.2)(P) * 0.3 - 2.0
        Dskip = (lambda *s: torch.randn(*s, dtype=torch.bfloat16) * 0.05)(D)
        return {
            "x": _w((lambda *s: torch.randn(*s, dtype=torch.bfloat16) * 0.05)(B, S, D)),
            "Lambda_re": _w(Lambda_re),
            "Lambda_im": _w(Lambda_im),
            "B_re": _w(B_re),
            "B_im": _w(B_im),
            "C_re": _w(C_re),
            "C_im": _w(C_im),
            "log_dt": _w(log_dt),
            "Dskip": _w(Dskip),
        }
    _A_in = _A_setup()

    def _B_setup():
        B, S, D, F = 1, 2048, 576, 4608
        return {
            "x": _w((lambda *s: torch.randn(*s, dtype=torch.bfloat16) * 0.05)(B, S, D)),
            "w1": _w((lambda *s: torch.randn(*s, dtype=torch.bfloat16) * 0.8)(D, F) * (D ** -0.5)),
            "w2": _w((lambda *s: torch.randn(*s, dtype=torch.bfloat16) * 0.2)(F, D) * (F ** -0.5)),
        }
    _B_in = _B_setup()

    return {
        "A_x": _A_in["x"],
        "A_Lambda_re": _A_in["Lambda_re"],
        "A_Lambda_im": _A_in["Lambda_im"],
        "A_B_re": _A_in["B_re"],
        "A_B_im": _A_in["B_im"],
        "A_C_re": _A_in["C_re"],
        "A_C_im": _A_in["C_im"],
        "A_log_dt": _A_in["log_dt"],
        "A_Dskip": _A_in["Dskip"],
        "B_x": _B_in["x"],
        "B_w1": _B_in["w1"],
        "B_w2": _B_in["w2"],
    }

def reference(A_x, A_Lambda_re, A_Lambda_im, A_B_re, A_B_im, A_C_re, A_C_im, A_log_dt, A_Dskip, B_x, B_w1, B_w2):
    def _A_ref(x, Lambda_re, Lambda_im, B_re, B_im, C_re, C_im, log_dt, Dskip):
        Bsz, L, H = x.shape
        Lam = Lambda_re + 1j * Lambda_im
        Bmat = B_re + 1j * B_im
        Cmat = C_re + 1j * C_im
        dt = torch.exp(log_dt)
        Lam_bar = torch.exp(dt * Lam)
        B_bar = ((Lam_bar - 1.0) / Lam)[:, None] * Bmat
        Bu = torch.einsum("bld,pd->blp", x + 0j, B_bar)
        h = torch.zeros_like(Bu[:, 0, :])
        hs = []
        for t in range(L):
            h = Lam_bar[None, :] * h + Bu[:, t, :]
            hs.append(h)
        hseq = torch.stack(hs, 1)
        y = 2.0 * torch.einsum("blp,dp->bld", hseq, Cmat).real + x * Dskip[None, None, :]
        return y

    def _B_ref(x, w1, w2):
        h = torch.einsum("bsd,df->bsf", x, w1)
        h = _silu(h)
        out = torch.einsum("bsf,fd->bsd", h, w2)
        return out

    x = A_x
    xn = _layernorm(x, axis=-1)
    return x + _A_ref(xn, A_Lambda_re, A_Lambda_im, A_B_re, A_B_im, A_C_re, A_C_im, A_log_dt, A_Dskip) + _B_ref(xn, B_w1, B_w2)
```

```python
NAME = "parallel_sum__ssm_conv_s5__dense_activation_silu__prompt"
class Asm:
    def __init__(self):
        self.l = []
    def __call__(self, s):
        for x in s.split("\n"):
            x = x.strip()
            if x: self.l.append(("" if x.endswith(":") else "    ") + x)
    def label(self, s): self.l.append(s + ":")
    def c(self, s): self.l.append("    ; " + s)
    def text(self): return "\n".join(self.l) + "\n"

def kd(name, vgpr=512, accum=256, sgpr=102, extra=""):
    return f""".amdhsa_kernel {name}
  .amdhsa_next_free_vgpr {vgpr}
  .amdhsa_next_free_sgpr {sgpr}
  .amdhsa_accum_offset {accum}
  .amdhsa_group_segment_fixed_size 0
  .amdhsa_kernarg_size 120
  .amdhsa_user_sgpr_count 2
  .amdhsa_user_sgpr_kernarg_segment_ptr 1
  .amdhsa_system_sgpr_workgroup_id_x 1
{extra}.end_amdhsa_kernel
"""
def head(name):
    return f""".globl {name}
.p2align 8
.type {name},@function
{name}:
"""
```

```python
import re
TRANS = ("v_exp_f32", "v_log_f32", "v_rcp_f32", "v_rsq_f32", "v_sqrt_f32", "v_sin_f32", "v_cos_f32")
RW_DST = ("v_fmac_f32", "v_dot2c_f32_bf16", "v_writelane_b32")
def regs(op):
    op = op.strip()
    op = re.sub(r"^-|^abs\(|\)$|^\||\|$", "", op)
    m = re.fullmatch(r"([vas])(\d+)", op)
    if m: return [m.group(1) + m.group(2)]
    m = re.fullmatch(r"([vas])\[(\d+):(\d+)\]", op)
    if m: return [m.group(1) + str(i) for i in range(int(m.group(2)), int(m.group(3)) + 1)]
    if op in ("vcc", "exec", "m0"): return [op]
    if op in ("vcc_lo", "vcc_hi"): return ["vcc"]
    if op in ("exec_lo", "exec_hi"): return ["exec"]
    return []
class I:
    def __init__(self, text, tag=None):
        self.text = text.strip(); self.tag = tag
        t = self.text.split(";")[0].strip()
        p = t.split(None, 1); self.op = op = p[0]
        rest = p[1] if len(p) > 1 else ""
        rest = re.sub(r"\s+(op_sel|op_sel_hi|neg_lo|neg_hi|quad_perm):\[[^\]]*\]", "", rest)
        ops = [x.strip() for x in rest.split(",")] if rest else []
        if ops:
            lastp = ops[-1].split()
            self.mods = lastp[1:]; ops[-1] = lastp[0] if lastp else ""
        else: self.mods = []
        self.ops = ops
        R = []; W = []; self.srcc = []; self.ab = []; self.stdata = []
        if op.endswith(":") or op.startswith("."): k = "label"
        elif op.startswith("v_mfma"):
            k = "mfma"; W = regs(ops[0]); self.ab = regs(ops[1]) + regs(ops[2]); self.srcc = regs(ops[3]); R = self.ab + self.srcc
            self.passes = 8 if "32x32" in op else 4
        elif op.startswith("ds_read"): k = "dsr"; W = regs(ops[0]); R = regs(ops[1])
        elif op.startswith("ds_write"):
            k = "dsw"; R = sum((regs(o) for o in ops), [])
        elif op.startswith("ds_bpermute") or op.startswith("ds_swizzle"):
            k = "dsr"; W = regs(ops[0]); R = sum((regs(o) for o in ops[1:]), [])
        elif op.startswith("buffer_load") and "lds" in self.mods:
            k = "dma"; R = sum((regs(o) for o in ops), []) + ["m0"]
        elif op.startswith("buffer_load") or op.startswith("global_load"):
            k = "vld"; W = regs(ops[0]); R = sum((regs(o) for o in ops[1:]), [])
        elif op.startswith("buffer_store"):
            k = "vst"; R = sum((regs(o) for o in ops), [])
            if "x4" in op or "x3" in op: self.stdata = regs(ops[0])
        elif op.startswith("buffer_atomic"):
            k = "vst"; R = sum((regs(o) for o in ops), [])
            if "sc0" in self.mods: k = "vld"; W = regs(ops[0])
        elif op.startswith("s_load") or op.startswith("s_mem"):
            k = "smem"; W = regs(ops[0]); R = sum((regs(o) for o in ops[1:]), [])
        elif op in ("s_waitcnt",): k = "wait"
        elif op == "s_nop": k = "nop"
        elif op in ("s_barrier", "s_sleep", "s_setprio", "s_endpgm"): k = "sctl"
        elif op.startswith("s_cbranch") or op in ("s_branch", "s_setpc_b64"): k = "branch"
        elif op.startswith("s_cmp") or op.startswith("s_bitcmp"): k = "salu"; R = sum((regs(o) for o in ops), [])
        elif op.startswith("s_"):
            k = "salu"; W = regs(ops[0]); R = sum((regs(o) for o in ops[1:]), [])
            if "saveexec" in op: W = W + ["exec"]; R = R + ["exec"]
        elif op.startswith("v_permlane") and "swap" in op:
            k = "valu"; W = regs(ops[0]) + regs(ops[1]); R = list(W)
        elif op.startswith("v_"):
            k = "valu"; W = regs(ops[0]); R = sum((regs(o) for o in ops[1:]), [])
            b = op.replace("_e32", "").replace("_e64", "").replace("_dpp", "")
            if b in RW_DST: R = R + W
            if op.startswith("v_add_co") or op.startswith("v_addc_co") or op.startswith("v_sub_co"):
                W = W + regs(ops[1])
            if op.startswith("v_cmpx"): W = W + ["exec"]
        else: raise ValueError("unknown instr " + text)
        self.k = k; self.R = set(R); self.W = set(W)
        self.trans = op.replace("_e32", "").replace("_e64", "") in TRANS
        self.dot = op.startswith("v_dot")
        self.dpp = "dpp" in op or any(m.startswith(("row_", "quad_perm", "wave_")) for m in self.mods)
    def states(self):
        if self.k == "label": return 0
        if self.k == "nop": return int(self.ops[0], 0) + 1
        return 1
class WaitL:
    def __init__(self, tag): self.tag = tag
class WaitV:
    def __init__(self, tag): self.tag = tag
class Reset:
    def __init__(self, v=True, l=True): self.v = v; self.l = l

def need(p, c):
    n = 0
    vmem = c.k in ("vld", "vst", "dma"); ds = c.k in ("dsr", "dsw")
    if p.k == "mfma":
        big = {8: 12, 4: 8}[p.passes]
        if c.k == "mfma":
            if p.W & set(c.ab): n = max(n, big)
            ov = p.W & set(c.srcc)
            if ov and (set(c.srcc) != p.W or c.passes != p.passes): n = max(n, {8: 10, 4: 6}[p.passes])
            if (p.W & c.W) and set(c.srcc) != p.W: n = max(n, {8: 10, 4: 6}[p.passes])
        elif c.k == "valu" or vmem or ds:
            if p.W & (c.R | c.W): n = max(n, big)
            if c.k == "valu" and set(p.srcc) & c.W: n = max(n, {8: 7, 4: 3}[p.passes])
    if p.k == "valu":
        vw = {r for r in p.W if r[0] in "va" and r != "vcc"}
        sw = p.W - vw
        if c.k == "mfma":
            if vw & c.R: n = max(n, 3 if p.dot else 2)
            if "exec" in sw: n = max(n, 4)
        if c.k == "valu":
            if p.trans and not c.trans and vw & c.R: n = max(n, 1)
            if p.dot and vw & (c.R | c.W):
                same = c.op == p.op
                if not same: n = max(n, 3)
                else:
                    ab = set(sum((regs(o) for o in c.ops[1:3]), []))
                    if vw & ab: n = max(n, 3)
            if (c.dpp or c.op.startswith("v_permlane")) and vw & c.R: n = max(n, 2)
            if c.op.startswith(("v_readlane", "v_readfirstlane")) and vw & c.R: n = max(n, 1)
            if sw & c.R: n = max(n, 4 if c.op.startswith(("v_readlane", "v_writelane", "v_div_fmas")) else 2)
            if "vcc" in sw and c.op.startswith("v_div_fmas"): n = max(n, 4)
            if "exec" in sw: n = max(n, 5)
        if p.dot and (vmem or ds) and vw & c.R: n = max(n, 3)
        if vmem and sw & c.R: n = max(n, 5)
        if c.k in ("salu", "branch") and (sw & c.R or c.k == "branch" and sw): n = max(n, 1)
    if p.k == "vst" and p.stdata and set(p.stdata) & c.W: n = max(n, 2)
    if p.k == "salu" and "m0" in p.W and c.k == "dma": n = max(n, 1)
    return n

class Prog:
    def __init__(self):
        self.items = []
    def __call__(self, s, tag=None):
        if isinstance(s, (list, tuple)):
            for x in s: self(x, tag)
        elif isinstance(s, str):
            for x in s.split("\n"):
                if x.strip(): self.items.append(I(x, tag))
        else: self.items.append(s)
    def finish(self, verbose=False):
        out = []; lq = []; vq = []
        stats = dict(autoL=0, autoV=0, nops=0, maxv=0, maxl=0)
        def waitq(q, idx, name, cap):
            n = len(q) - 1 - idx
            del q[:idx + 1]
            n = min(n, cap)
            return n
        def emit(ins):
            dist = 0; pad = 0
            for p in reversed(out):
                if dist >= 20: break
                nd = need(p, ins) - dist
                pad = max(pad, nd)
                dist += p.states()
            if pad > 0:
                stats["nops"] += 1
                out.append(I("s_nop %d" % (pad - 1)))
            out.append(ins)
        def emit_wait(v=None, l=None):
            if v is None and l is None: return
            if out and out[-1].k == "wait" and getattr(out[-1], "auto", False):
                pv, pl = out[-1].vl; out.pop()
                v = pv if v is None else (v if pv is None else min(v, pv))
                l = pl if l is None else (l if pl is None else min(l, pl))
            w = I("s_waitcnt " + " ".join(x for x in ("vmcnt(%d)" % v if v is not None else "", "lgkmcnt(%d)" % l if l is not None else "") if x))
            w.auto = True; w.vl = (v, l); out.append(w)
        for it in self.items:
            if isinstance(it, Reset):
                if it.v: vq = []
                if it.l: lq = []
                continue
            if isinstance(it, (WaitL, WaitV)):
                q = lq if isinstance(it, WaitL) else vq
                idx = max((i for i, e in enumerate(q) if it.tag is None or e.tag == it.tag), default=-1)
                if idx >= 0:
                    if isinstance(it, WaitL):
                        sm = any(e.k == "smem" for e in q)
                        if sm: idx = len(q) - 1
                        emit_wait(l=min(15, waitq(q, idx, "l", 10**6)))
                    else: emit_wait(v=waitq(q, idx, "v", 63))
                continue
            touched = it.R | it.W
            li = max((i for i, e in enumerate(lq) if e.W & touched), default=-1)
            vi = max((i for i, e in enumerate(vq) if e.W & touched), default=-1)
            v = l = None
            if li >= 0:
                if any(e.k == "smem" for e in lq): li = len(lq) - 1
                l = min(15, waitq(lq, li, "l", 10**6)); stats["autoL"] += 1
            if vi >= 0: v = waitq(vq, vi, "v", 63); stats["autoV"] += 1
            emit_wait(v, l)
            if it.k == "wait":
                m = re.search(r"vmcnt\((\d+)\)", it.text)
                if m: del vq[:max(0, len(vq) - int(m.group(1)))]
                m = re.search(r"lgkmcnt\((\d+)\)", it.text)
                if m: del lq[:max(0, len(lq) - int(m.group(1)))]
            emit(it)
            if it.k in ("dsr", "dsw", "smem"): lq.append(it); stats["maxl"] = max(stats["maxl"], len(lq))
            if it.k in ("vld", "vst", "dma"): vq.append(it); stats["maxv"] = max(stats["maxv"], len(vq))
        self.out = out; self.stats = stats
        return "\n".join(("" if i.k == "label" else "    ") + i.text for i in out) + "\n"

COST = dict(valu=1, salu=1, wait=1, sctl=1, dsr=1, dma=1.5, vld=1.5, vst=6, dsw=7, nop=1, smem=1, branch=1, label=0)
def cost(x):
    if isinstance(x, (WaitL, WaitV)): return 1
    if isinstance(x, Reset): return 0
    if x.trans or x.op.startswith("v_permlane"): return 2
    return COST[x.k]
class Gaps:
    def __init__(self, mf):
        self.mf = [I(m) if isinstance(m, str) else m for m in mf]
        self.g = [dict(pre=[], ds=[], vm=[], va=[]) for _ in mf]
    def add(self, gap, slot, x, tag=None):
        if isinstance(x, (list, tuple)):
            for y in x: self.add(gap, slot, y, tag)
            return
        if isinstance(x, str): x = I(x, tag)
        self.g[gap][slot].append(x)
    def load(self, gap): return sum(cost(x) for s in self.g[gap].values() for x in s)
    def spread(self, items, g0, g1, tag=None):
        items = [I(x, tag) if isinstance(x, str) else x for x in items]
        tot = sum(cost(x) for x in items)
        loads = [self.load(g) for g in range(g0, g1)]
        lo, hi = 0.0, 1000.0
        for _ in range(40):
            mid = (lo + hi) / 2
            if sum(max(0, mid - l) for l in loads) >= tot: hi = mid
            else: lo = mid
        cum = 0.0; done = 0.0; i = 0
        for g in range(g0, g1):
            cum += max(0, hi - loads[g - g0])
            while i < len(items) and (done + cost(items[i]) / 2.0 <= cum + 1e-6 or g == g1 - 1):
                self.g[g]["va"].append(items[i]); done += cost(items[i]); i += 1
        return hi
    def emit(self, p):
        for m, g in zip(self.mf, self.g):
            p(m)
            for s in ("pre", "ds", "vm", "va"): p(g[s])
```

```python
import sys, struct
from fw import *
from asmlib import NAME, kd, head
def f2u(x): return struct.unpack("<I", struct.pack("<f", x))[0]
LOG2E = 1.4426950408889634
CARRY = 0x2800000; STATS = 0x2900000; STAMP = 0x8000000
OPT = dict(stamp=0)
sW, sM, sQ, sG, sS = 3, 4, 5, 6, 7
SX, SA, SB, SWS, SC = 48, 52, 56, 60, 64
sWB = 8
sOFF = 9
sST = 10
XN = 112
def srd(p, d, ptr, size):
    p("s_mov_b32 s%d, s%d\ns_mov_b32 s%d, s%d\ns_mov_b32 s%d, 0x%x\ns_mov_b32 s%d, 0x20000" % (d, ptr, d+1, ptr+1, d+2, size, d+3))
def S(d): return "s[%d:%d]" % (d, d+3)
def V(a, n=4): return "v[%d:%d]" % (a, a+n-1)
def A(a, n=4): return "a[%d:%d]" % (a, a+n-1)
def stamp(p, i):
    if OPT["stamp"]:
        p("s_memrealtime s[%d:%d]" % (70+2*i, 71+2*i))
def stamp_flush(p, n):
    if not OPT["stamp"]: return
    p("s_waitcnt vmcnt(0)")
    stamp(p, n-1)
    p("s_waitcnt lgkmcnt(0)")
    p("s_lshl_b32 s11, s2, 2\ns_add_u32 s11, s11, s%d\ns_lshl_b32 s11, s11, 7\ns_add_u32 s11, s11, 0x%x\nv_mov_b32 v1, 0" % (sW, STAMP))
    for i in range(n):
        p("v_mov_b32 v2, s%d\nv_mov_b32 v3, s%d\nbuffer_store_dwordx2 v[2:3], v1, %s, s11 offen offset:%d" % (70+2*i, 71+2*i, S(SWS), 8*i))

def entry(p):
    p("s_cmp_ge_u32 s2, 256\ns_cbranch_scc0 L_go\ns_endpgm\nL_go:")
    stamp(p, 0)
    p("s_load_dwordx16 s[16:31], s[0:1], 0\ns_load_dwordx8 s[32:39], s[0:1], 64\ns_load_dwordx4 s[40:43], s[0:1], 96\ns_load_dwordx2 s[44:45], s[0:1], 112")
    p("s_getpc_b64 s[12:13]\nL_pc:")
    p("v_lshrrev_b32 v1, 6, v0\nv_and_b32 v0, 63, v0\nv_readfirstlane_b32 s%d, v1" % sW)
    p("s_lshr_b32 s11, s2, 3\ns_and_b32 s%d, s11, 3\ns_bfe_u32 s%d, s2, 0x20001" % (sQ, sG))
    p("s_and_b32 s14, s2, 1\ns_lshl_b32 s14, s14, 3\ns_lshr_b32 s%d, s11, 2\ns_add_u32 s%d, s%d, s14" % (sM, sM, sM))
    p("s_lshl_b32 s14, s11, 2\ns_add_u32 s14, s14, s%d\ns_mul_i32 s14, s14, 5" % sW)
    p("v_min_u32 v1, 4, v0\nv_add_u32 v1, s14, v1\nv_lshlrev_b32 v1, 7, v1\nv_min_u32 v1, L_code_end-L_pc-4, v1")
    p("v_mov_b32 v3, s13\nv_add_co_u32 v2, vcc, s12, v1\nv_addc_co_u32 v3, vcc, 0, v3, vcc")
    p("global_load_dword v4, v[2:3], off", tag="pf")
    p("v_bfe_u32 v5, v0, 2, 1\nv_lshlrev_b32 v5, 4, v5\nv_bfe_u32 v6, v0, 3, 2\nv_lshl_add_u32 v5, v6, 2, v5\nv_and_b32 v6, 3, v0\nv_add_u32 v5, v5, v6")
    p("s_lshl_b32 s14, s%d, 2\ns_add_u32 s14, s14, s%d\ns_lshl_b32 s15, s14, 5\nv_add_u32 v5, s15, v5\nv_lshrrev_b32 v6, 5, v0" % (sM, sW))
    p("v_mul_u32_u24 v7, 1152, v5\nv_lshl_add_u32 v7, v6, 4, v7")
    p("s_waitcnt lgkmcnt(0)")
    srd(p, SX, 16, 2048*1152)
    for j in range(36):
        p("buffer_load_dwordx4 %s, v7, %s, 0 offen offset:%d" % (V(XN+4*j), S(SX), 32*j), tag="x%d" % j)
    srd(p, SWS, 44, 0x10000000)
    p("s_mul_i32 s15, s14, %d\nv_lshlrev_b32 v8, 4, v0\nv_add_u32 v8, s15, v8" % (9*65536))

def stats(p, dmas, scale):
    p("v_mov_b32 v9, 0\nv_mov_b32 v10, 0\nv_mov_b32 v11, 0\nv_mov_b32 v12, 0\ns_mov_b32 s14, 0x3f803f80")
    dmas = list(dmas)
    for j in range(36):
        if j % 2 == 0: p(WaitV("x%d" % (j+1)))
        for r in range(4):
            x = XN+4*j+r
            p("v_dot2c_f32_bf16 v%d, s14, v%d\nv_dot2c_f32_bf16 v%d, v%d, v%d" % (9+(r & 1), x, 11+(r & 1), x, x))
        if dmas and j % 2 == 1 and j >= 9: p(dmas.pop(0))
    for d in dmas: p(d)
    p("v_add_f32 v9, v9, v10\nv_add_f32 v11, v11, v12\nv_mov_b32 v10, v9\nv_mov_b32 v12, v11")
    p("v_permlane32_swap_b32 v9, v10\nv_permlane32_swap_b32 v11, v12\nv_add_f32 v9, v9, v10\nv_add_f32 v11, v11, v12")
    p("v_mul_f32 v9, 0x%x, v9\nv_mul_f32 v11, 0x%x, v11" % (f2u(1/576.), f2u(1/576.)))
    p("v_fma_f32 v12, -v9, v9, v11\nv_max_f32 v12, 0, v12\nv_cvt_pk_bf16_f32 v10, v9, v12")
    p("v_lshlrev_b32 v11, 16, v10\nv_and_b32 v12, 0xffff0000, v10\nv_add_f32 v12, 0x%x, v12" % f2u(1e-5))
    p("v_cvt_pk_bf16_f32 v12, v12, v12\nv_and_b32 v12, 0xffff0000, v12\nv_sqrt_f32 v12, v12")
    p("v_cvt_pk_bf16_f32 v12, v12, v12\nv_and_b32 v12, 0xffff0000, v12\nv_rcp_f32 v9, v12")
    if scale != 1.0: p("v_mul_f32 v9, 0x%x, v9" % f2u(scale))
    p("v_mul_f32 v10, v9, v11\nv_xor_b32 v10, 0x80000000, v10")
def center(j, t):
    o = []
    for h in range(2):
        a, b = XN+4*j+2*h, XN+4*j+2*h+1
        o += ["v_lshlrev_b32 v%d, 16, v%d" % (t, a), "v_and_b32 v%d, s15, v%d" % (t+1, a), "v_lshlrev_b32 v%d, 16, v%d" % (t+2, b), "v_and_b32 v%d, s15, v%d" % (t+3, b)]
        o += ["v_fma_f32 v%d, v%d, v9, v10" % (t+k, t+k) for k in range(4)]
        o += ["v_cvt_pk_bf16_f32 v%d, v%d, v%d" % (a, t, t+1), "v_cvt_pk_bf16_f32 v%d, v%d, v%d" % (b, t+2, t+3)]
    return o

def epilogue_items(acc, pk):
    fr = []
    for u in range(2):
        for h in range(2):
            f = 2*u+h
            cv = ["v_cvt_pk_bf16_f32 v%d, v%d, v%d" % (pk+4*f+q, acc[u]+8*h+2*q, acc[u]+8*h+2*q+1) for q in range(4)]
            st = "buffer_store_dwordx4 %s, v8, %s, s%d offen offset:%d%s" % (V(pk+4*f), S(SWS), sST, 1024*f, OPT.get("stflav", " sc1"))
            fr.append((cv, st))
    return fr

def place_reads(G, nfr, rd, L, avoid, maxper, wgrp):
    pro = []
    q = []
    for n in range(min(L, nfr)): pro += [I(x, "f%d" % n) for x in rd(n)]
    nxt = L
    for g in range(nfr):
        if nxt < nfr and nxt <= g + L: q += [I(x, "f%d" % nxt) for x in rd(nxt)]; nxt += 1
        lim = avoid.get(g, maxper)
        k = 0
        while q and k < lim:
            G.add(g, "ds", q.pop(0)); k += 1
        if g % wgrp == wgrp-1 and g+1 < nfr:
            G.g[g]["pre"].append(WaitL("f%d" % min(g+wgrp, nfr-1)))
    assert not q
    return pro

def ffn(p):
    DV = 13
    RB = 19
    DV2 = 25
    T = 32
    ACC = [[40, 56], [72, 88]]
    HV = 104
    FB = 0; NFB = 12
    HA = 48
    p("s_mul_i32 s%d, s%d, 3\ns_add_u32 s%d, s%d, s%d" % (sS, sG, sS, sS, sQ))
    srd(p, SA, 36, 576*9216); srd(p, SB, 38, 4608*1152)
    p("s_lshl_b32 s14, s%d, 12\nv_add_u32 v8, s14, v8" % sS)
    p("v_lshrrev_b32 v1, 3, v0\nv_and_b32 v2, 7, v0\nv_lshlrev_b32 v3, 1, v1\nv_and_b32 v3, 4, v3\nv_xor_b32 v2, v2, v3\nv_lshlrev_b32 v2, 4, v2")
    p("s_mul_i32 s14, s%d, 48\nv_add_u32 v1, s14, v1\nv_mul_u32_u24 v3, 9216, v1\ns_mul_i32 s14, s%d, 768\nv_add3_u32 v%d, v3, v2, s14" % (sW, sS, DV))
    p("v_mul_u32_u24 v3, 1152, v1\ns_mul_i32 s14, s%d, %d\nv_add3_u32 v%d, v3, v2, s14" % (sS, 384*1152, DV2))
    for i in range(1, 6):
        p("v_add_u32 v%d, %d, v%d" % (DV+i, i*8*9216 - (i % 3)*1024, DV))
    p("s_mul_i32 s%d, s%d, 6144" % (sWB, sW))
    def dma(st, i):
        pre = []
        if st < 18: so = (st % 3)*192*9216 + (st//3)*128; dv, sr = DV, SA
        else: so = ((st-18) % 2)*192*1152 + ((st-18)//2)*128; dv, sr = DV2, SB
        if i == 0: pre.append("s_mov_b32 s%d, 0x%x" % (sOFF, so))
        if i % 3 == 0: pre.append("s_add_u32 m0, s%d, 0x%x" % (sWB, (st % 6)*24576 + i*1024))
        return pre, I("buffer_load_dwordx4 v%d, %s, s%d offen offset:%d lds" % (dv+i, S(sr), sOFF, (i % 3)*1024), "st%d" % st)
    def dmas(st, i0, i1):
        o = []
        for i in range(i0, i1):
            a, b = dma(st, i); o += a + [b]
        return o
    for st in range(4): p(dmas(st, 0, 6))
    for i in range(1, 6):
        p("v_add_u32 v%d, %d, v%d" % (DV2+i, i*8*1152 - (i % 3)*1024, DV2))
    p("v_and_b32 v1, 15, v0\nv_lshrrev_b32 v1, 2, v1\nv_lshl_add_u32 v1, v6, 3, v1\nv_lshlrev_b32 v1, 7, v1")
    p("v_and_b32 v2, 3, v0\nv_lshl_add_u32 v1, v2, 3, v1\nv_bfe_u32 v2, v0, 4, 1\nv_lshl_add_u32 v1, v2, 5, v1\nv_bfe_u32 v2, v0, 3, 1\nv_lshl_add_u32 v%d, v2, 6, v1" % RB)
    p("v_xor_b32 v%d, 64, v%d" % (RB+1, RB))
    for k in range(2, 6): p("v_add_u32 v%d, 0x%x, v%d" % (RB+k, (k//2)*49152, RB+(k & 1)))
    stats(p, [dmas(4, 0, 3), dmas(4, 3, 6)], -LOG2E)
    stamp(p, 1)
    p("v_lshlrev_b32 v1, 3, v5\nv_add_u32 v1, 0x%x, v1\nv_mov_b32 v2, v11\nv_mov_b32 v3, v12\nbuffer_store_dwordx2 v[2:3], v1, %s, 0 offen" % (STATS, S(SWS)))
    p("s_mov_b32 s15, 0xffff0000")
    RB2 = XN
    PK = XN+8
    HL = XN+24
    def hreg(U):
        if U == 0: return "v", HV
        if U >= 10: return "v", HL + 8*(U-10)
        return "a", HA + 8*(U-1)
    mf = []
    for pr in range(6):
        for j in range(36):
            for u in range(2):
                n = len(mf); c = V(ACC[pr & 1][u], 16)
                mf.append("v_mfma_f32_32x32x16_bf16 %s, %s, %s, %s" % (c, A(FB+4*(n % NFB)), V(XN+4*j), c if j else "0"))
    for dp in range(9):
        for kk in range(24):
            k, b = hreg(kk//2); hb = "%s[%d:%d]" % (k, b+4*(kk & 1), b+4*(kk & 1)+3)
            for u in range(2):
                n = len(mf); c = V(ACC[dp & 1][u], 16)
                mf.append("v_mfma_f32_32x32x16_bf16 %s, %s, %s, %s" % (c, A(FB+4*(n % NFB)), hb, c if kk else "0"))
    G = Gaps(mf); N = len(mf)
    def rd(n):
        st, r = divmod(n, 24); jj, u = divmod(r, 2); sl = st % 6; fb = FB+4*(n % NFB)
        base = (RB if st < 18 else RB2) + 2*(sl//2) + u
        off = (sl & 1)*24576 + jj*2048; dq = 512 if st < 18 else 1024
        return ["ds_read_b64_tr_b16 %s, v%d offset:%d" % (A(fb, 2), base, off), "ds_read_b64_tr_b16 %s, v%d offset:%d" % (A(fb+2, 2), base, off+dq)]
    avoid = {}
    for st in range(36):
        g = 24*st
        if st+1 < 36:
            G.add(g, "pre", WaitV("st%d" % (st+1))); G.add(g, "pre", "s_barrier")
        if st+5 < 36:
            for i in range(6):
                gg = g + 1 + 4*i
                a, b = dma(st+5, i)
                G.add(gg, "pre", a); G.add(gg, "vm", b); avoid[gg] = 1
    ep = {}
    for dp in range(8):
        g0 = 432 + 48*(dp+1)
        fr = epilogue_items(ACC[dp & 1], PK); ep[dp] = fr
        G.add(g0+2, "pre", "s_mov_b32 s%d, 0x%x" % (sST, dp*65536))
        for f in range(4):
            gg = g0 + 10 + 8*f
            G.add(gg, "vm", fr[f][1], "ps"); avoid[gg] = 0
    pro = place_reads(G, N, rd, 8, avoid, 3, 4)
    for dp in range(8):
        g0 = 432 + 48*(dp+1)
        for f in range(4): G.spread(ep[dp][f][0], g0+3+8*f, g0+10+8*f)
    for j in range(2, 36): G.spread(center(j, T + 4*(j & 1)), 2*j-4, 2*j-2)
    G.spread(["v_lshlrev_b32 v1, 9, v6"] + ["v_sub_u32 v%d, v%d, v1" % (RB2+k, RB+k) for k in range(6)], 360+8, 360+40)
    def silu(pr):
        o = []
        for u in range(2):
            k, b = hreg(2*pr+u); ac = ACC[pr & 1][u]
            for g4 in range(4):
                t = T + 4*(g4 & 1); z = ac+4*g4
                ex = ["v_exp_f32 v%d, v%d" % (t+q, z+q) for q in range(4)]
                ad = ["v_add_f32 v%d, 1.0, v%d" % (t+q, t+q) for q in range(4)]
                rc = ["v_rcp_f32 v%d, v%d" % (t+q, t+q) for q in range(4)]
                mu = ["v_mul_f32 v%d, v%d, v%d" % (t+q, z+q, t+q) for q in range(4)]
                if k == "v": cv = [["v_cvt_pk_bf16_f32 v%d, v%d, v%d" % (b+2*g4+q, t+2*q, t+2*q+1)] for q in range(2)]
                else: cv = [["v_cvt_pk_bf16_f32 v%d, v%d, v%d" % (t+2*q, t+2*q, t+2*q+1), "v_accvgpr_write_b32 a%d, v%d" % (b+2*g4+q, t+2*q)] for q in range(2)]
                o.append((ex, ad, rc, mu, cv))
        r = []
        for i in range(len(o)+1):
            cur = o[i] if i < len(o) else None; prv = o[i-1] if i else None
            tail = []
            if prv: tail = prv[3][:2] + prv[4][0][:1] + prv[3][2:] + prv[4][0][1:] + prv[4][1]
            if cur:
                ex, ad, rc = cur[0], cur[1], cur[2]
                seq = [ex[0], None, ex[1], ad[0], None, ex[2], ad[1], None, ex[3], ad[2], None, rc[0], ad[3], None, rc[1], None, rc[2], None, rc[3], None]
            else: seq = []
            for x in seq:
                if x is None:
                    if tail: r.append(tail.pop(0))
                else: r.append(x)
            r += tail
        return r
    for pr in range(5): G.spread(silu(pr), 72*(pr+1)+3, 72*(pr+2)-1)
    s5 = silu(5); G.spread(s5, 432+3, 432+38)
    p(center(0, T)); p(center(1, T+4))
    p(WaitV("st0")); p("s_barrier"); p(pro); p(WaitL("f3"))
    if OPT["stamp"]:
        G.add(72, "pre", "s_memrealtime s[74:75]"); G.add(432, "pre", "s_memrealtime s[76:77]")
    G.emit(p)
    stamp(p, 4)
    fr = epilogue_items(ACC[0], PK)
    p("s_mov_b32 s%d, 0x%x" % (sST, 8*65536))
    for f in range(4): p(fr[f][0]); p(fr[f][1], "ps")
    stamp_flush(p, 6)
    p("s_endpgm")
    if OPT.get("verbose"):
        ld = [G.load(g) for g in range(N)]
        for b in range(0, N, 72): print("ffn gaps %d: mean %.2f max %.1f" % (b, sum(ld[b:b+72])/72, max(ld[b:b+72])), file=sys.stderr)

def cmul(d, a, b, t):
    return ["v_mul_f32 v%d, v%d, v%d" % (t, a+1, b+1), "v_mul_f32 v%d, v%d, v%d" % (t+1, a+1, b),
            "v_fma_f32 v%d, v%d, v%d, v%d" % (d+1, a, b+1, t+1), "v_fma_f32 v%d, v%d, v%d, -v%d" % (d, a, b, t)]
def cfma(d, a, h, u):
    return ["v_fma_f32 v%d, v%d, v%d, v%d" % (d, a, h, u), "v_fma_f32 v%d, v%d, v%d, v%d" % (d+1, a, h+1, u+1),
            "v_fma_f32 v%d, -v%d, v%d, v%d" % (d, a+1, h+1, d), "v_fmac_f32 v%d, v%d, v%d" % (d+1, a+1, h)]
def ssm(p):
    DV = 13
    DV2 = 22
    RB = 32
    RC = 40
    TS = 44
    T = 52
    XA = 147456; PAR = XA; EX = XA + 4096
    FB = 144; NFB = 12
    p("L_ssm:"); p(Reset(v=False, l=True))
    p("s_add_u32 s%d, s%d, 12\ns_lshl_b32 s14, s%d, 12\nv_add_u32 v8, s14, v8" % (sS, sG, sS))
    p("s_cmp_ge_u32 s%d, 2\ns_cselect_b32 s%d, s24, s22\ns_cselect_b32 s%d, s25, s23\ns_cselect_b32 s%d, s28, s26\ns_cselect_b32 s%d, s29, s27" % (sW, SA, SA+1, SB, SB+1))
    p("s_mov_b32 s%d, %d\ns_mov_b32 s%d, 0x20000\ns_mov_b32 s%d, %d\ns_mov_b32 s%d, 0x20000" % (SA+2, 576*1152, SA+3, SB+2, 576*1152, SB+3))
    p("s_mul_i32 s46, s%d, 144" % sG)
    p("s_lshl_b32 s14, s%d, 6\nv_add_u32 v1, s14, v0\nv_min_u32 v1, 143, v1\nv_lshlrev_b32 v%d, 3, v1\nv_add_u32 v1, s46, v1\nv_lshlrev_b32 v1, 1, v1" % (sW, TS+6))
    p("global_load_ushort v%d, v1, s[18:19]\nglobal_load_ushort v%d, v1, s[20:21]\nglobal_load_ushort v%d, v1, s[30:31]" % (T, T+1, T+2), tag="par")
    p("s_lshl_b32 s14, s%d, 15\ns_add_u32 s14, s14, 0x%x\ns_add_u32 s%d, s44, s14\ns_addc_u32 s%d, s45, 0\ns_mov_b32 s%d, 32768\ns_mov_b32 s%d, 0x20000" % (sG, CARRY, SC, SC+1, SC+2, SC+3))
    p("s_lshl_b32 s47, s%d, 11\nv_mov_b32 v2, -1\nv_mov_b32 v3, -1\nbuffer_store_dwordx2 v[2:3], v%d, %s, s47 offen sc1" % (sM, TS+6, S(SC)), tag="clr")
    p("v_lshrrev_b32 v1, 3, v0\nv_add_u32 v1, s46, v1\nv_mul_u32_u24 v1, 1152, v1\nv_and_b32 v2, 7, v0\nv_lshrrev_b32 v3, 4, v0\nv_xor_b32 v2, v2, v3")
    p("s_and_b32 s14, s%d, 1\ns_lshl_b32 s14, s14, 2\nv_xor_b32 v2, s14, v2\nv_lshl_add_u32 v3, v2, 4, v1\nv_xor_b32 v2, 4, v2\nv_lshl_add_u32 v2, v2, 4, v1" % sW)
    p("s_mul_i32 s14, s%d, 72\ns_cmp_ge_u32 s%d, 2\ns_cselect_b32 s15, 160, 0\ns_sub_i32 s14, s14, s15\ns_cmp_eq_u32 s%d, 2\ns_cselect_b32 s15, 144, 0\ns_add_i32 s15, s15, s14" % (sW, sW, sW))
    p("s_mul_i32 s14, s14, 1152\ns_mul_i32 s15, s15, 1152")
    for i in range(9):
        p("s_add_i32 s11, s%d, %d\nv_add_u32 v%d, s11, v%d" % (15 if i < 2 else 14, i*8*1152, DV+i, 2 if i & 1 else 3))
    p("s_mul_i32 s%d, s%d, 9216" % (sWB, sW))
    def dma(st, i):
        pre = []
        if st < 9: so = st*128; dv, sr = DV, SA
        else: so = (st-9)*64*1152; dv, sr = DV2, SB
        if i == 0: pre.append("s_mov_b32 s%d, 0x%x" % (sOFF, so))
        pre.append("s_add_u32 m0, s%d, 0x%x" % (sWB, (st % 4)*36864 + i*1024))
        return pre, I("buffer_load_dwordx4 v%d, %s, s%d offen lds" % (dv+i, S(sr), sOFF), "st%d" % st)
    def dmas(st, i0, i1):
        o = []
        for i in range(i0, i1):
            a, b = dma(st, i); o += a + [b]
        return o
    p(dmas(0, 0, 9)); p(dmas(1, 0, 9))
    assert all((n*3641) >> 16 == n//18 for n in range(576))
    p("s_and_b32 s14, s%d, 1\ns_mul_i32 s14, s14, %d\ns_lshl_b32 s15, s46, 1\ns_add_u32 s14, s14, s15" % (sW, 32*1152))
    for i in range(9):
        p("v_add_u32 v1, %d, v0\nv_mul_u32_u24 v2, 3641, v1\nv_lshrrev_b32 v2, 16, v2\nv_mul_u32_u24 v3, 18, v2\nv_sub_u32 v1, v1, v3" % (64*i))
        p("v_bfe_u32 v3, v2, 3, 1\nv_xor_b32 v1, v1, v3\nv_mul_u32_u24 v2, 1152, v2\nv_lshl_add_u32 v1, v1, 4, v2\nv_add_u32 v%d, s14, v1" % (DV2+i))
    p("v_and_b32 v1, 31, v0\nv_bfe_u32 v2, v0, 1, 3\nv_xor_b32 v2, v2, v6\nv_lshlrev_b32 v3, 7, v1")
    for jj in range(4): p("v_xor_b32 v4, %d, v2\nv_lshl_add_u32 v%d, v4, 4, v3\nv_mov_b32 v%d, v%d" % (2*jj, RB+jj, RB+4+jj, RB+jj))
    p("v_mul_u32_u24 v1, 288, v1\nv_bfe_u32 v2, v0, 3, 1\nv_xor_b32 v2, v2, v6\nv_lshl_add_u32 v%d, v2, 4, v1" % RC)
    for sl in range(1, 4): p("v_add_u32 v%d, 0x%x, v%d" % (RC+sl, sl*36864, RC))
    stats(p, [dmas(2, 0, 3), dmas(2, 3, 6), dmas(2, 6, 9)], 1.0)
    stamp(p, 1)
    lr, li, dt = T, T+1, T+2
    p("v_lshlrev_b32 v%d, 16, v%d\nv_lshlrev_b32 v%d, 16, v%d\nv_lshlrev_b32 v%d, 16, v%d" % (lr, lr, li, li, dt, dt))
    p("v_mul_f32 v%d, 0x%x, v%d\nv_exp_f32 v%d, v%d\nv_cvt_pk_bf16_f32 v%d, v%d, v%d\nv_and_b32 v%d, 0xffff0000, v%d" % (dt, f2u(LOG2E), dt, dt, dt, dt, dt, dt, dt, dt))
    p("v_mul_f32 v1, v%d, v%d\nv_mul_f32 v2, v%d, v%d\nv_mul_f32 v1, 0x%x, v1\nv_mul_f32 v2, 0.15915494, v2\nv_exp_f32 v1, v1\nv_fract_f32 v2, v2" % (dt, lr, dt, li, f2u(LOG2E)))
    P0 = T+4
    p("v_cos_f32 v3, v2\nv_sin_f32 v4, v2\nv_mul_f32 v%d, v1, v3\nv_mul_f32 v%d, v1, v4" % (P0, P0+1))
    p("v_mul_f32 v1, v%d, v%d\nv_fmac_f32 v1, v%d, v%d\nv_rcp_f32 v1, v1\nv_add_f32 v2, -1.0, v%d\nv_mul_f32 v1, 0x%x, v1" % (lr, lr, li, li, P0, f2u(-2*LOG2E)))
    p("v_mul_f32 v3, v2, v%d\nv_fmac_f32 v3, v%d, v%d\nv_mul_f32 v4, v%d, v%d\nv_fma_f32 v4, -v2, v%d, v4" % (lr, P0+1, li, P0+1, lr, li))
    p("v_mul_f32 v%d, v3, v1\nv_mul_f32 v%d, v4, v1\nv_mov_b32 v%d, v%d\nv_mov_b32 v%d, v%d" % (P0+2, P0+3, TS+4, P0+2, TS+5, P0+3))
    p("v_lshlrev_b32 v1, 1, v%d\nv_add_u32 v1, 0x%x, v1\nds_write_b128 v1, %s" % (TS+6, PAR, V(P0)))
    def csq(d, a): return ["v_mul_f32 v1, v%d, v%d" % (a+1, a+1), "v_mul_f32 v2, v%d, v%d" % (a, a+1), "v_fma_f32 v%d, v%d, v%d, -v1" % (d, a, a), "v_add_f32 v%d, v2, v2" % (d+1)]
    p(csq(TS, P0) + csq(TS, TS) + csq(TS, TS) + csq(TS, TS) + csq(TS+2, TS) + csq(TS+2, TS+2) + csq(TS+2, TS+2))
    p("s_mov_b32 s15, 0xffff0000")
    mf = []
    for j in range(36):
        for t in range(9):
            n = len(mf); c = A(16*t, 16)
            mf.append("v_mfma_f32_32x32x16_bf16 %s, %s, %s, %s" % (c, V(XN+4*j), A(FB+4*(n % NFB)), c if j else "0"))
    G = Gaps(mf)
    L = 8
    def rd(n):
        j, t = divmod(n, 9)
        return ["ds_read_b128 %s, v%d offset:%d" % (A(FB+4*(n % NFB)), RB+4+(j & 3), t*4096)]
    for st in range(9):
        g = 36*st
        G.add(g, "pre", WaitV("st%d" % (st+1))); G.add(g, "pre", "s_barrier")
        for i in range(9):
            a, b = dma(st+3, i); G.add(g+1+3*i, "pre", a); G.add(g+1+3*i, "vm", b)
        if st < 8:
            for jj in range(4):
                G.add(g + 9*jj + 9, "va", "v_add_u32 v%d, 0x%x, v%d" % (RB+4+jj, ((st+1) % 4)*36864, RB+jj))
    pro = place_reads(G, 324, rd, L, {}, 1, 4)
    for j in range(1, 36): G.spread(center(j, T + 4 + 4*(j & 1)), 9*j-9, 9*j-1)
    p(center(0, T+4))
    p(WaitV("st0")); p(WaitL(None)); p("s_barrier")
    p("s_cmp_lg_u32 s%d, 0\ns_cbranch_scc1 L_ssm_na" % sW)
    p("s_lshl_b32 s14, s%d, 6\ns_add_u32 s12, s42, s14\ns_addc_u32 s13, s43, 0" % sG)
    p("s_mov_b64 exec, 1\nv_mov_b32 v1, 0\nv_mov_b32 v2, 1")
    x = I("buffer_atomic_add v2, v1, s[0:3], 0"); x.text = "global_atomic_add v1, v2, s[12:13]"; x.k = "salu"; p(x)
    p("s_mov_b64 exec, -1\nL_ssm_na:")
    p(pro); p(WaitL("f3"))
    G.emit(p)
    stamp(p, 2)
    U = 96
    PR = 64
    E = 84
    p("v_and_b32 v1, 31, v0\nv_lshlrev_b32 v2, 4, v1\nv_add_u32 v2, 0x%x, v2" % PAR)
    for k in range(5): p("ds_read_b128 %s, v2 offset:%d" % (V(PR+4*k), 512*k))
    p("s_lshl_b32 s14, s%d, 1\nv_add_u32 v3, s14, v6\nv_mul_u32_u24 v3, 1280, v3\nv_lshl_add_u32 v3, v1, 3, v3\nv_add_u32 v31, 0x%x, v3" % (sW, EX))
    for k in range(5):
        for r in range(16):
            p("v_accvgpr_read_b32 v%d, a%d\nv_accvgpr_read_b32 v%d, a%d" % (U+32*k+r, 16*k+r, U+32*k+16+r, 16*(k+5 if k < 4 else 4)+r))
    for r in range(16): p("v_permlane16_swap_b32 v%d, v%d" % (U+128+r, U+144+r))
    for t in range(1, 16):
        seqs = []
        for k in range(5):
            a = PR+4*k; ur, ui = U+32*k+t, U+32*k+16+t
            d = (E if t & 1 else T) + 2*k
            if t == 1: hr, hi_ = U+32*k, U+32*k+16
            else: hr = (T if t & 1 else E) + 2*k; hi_ = hr+1
            seqs.append(["v_fma_f32 v%d, v%d, v%d, v%d" % (d, a, hr, ur), "v_fma_f32 v%d, v%d, v%d, v%d" % (d+1, a, hi_, ui),
                         "v_fma_f32 v%d, -v%d, v%d, v%d" % (d, a+1, hi_, d), "v_fmac_f32 v%d, v%d, v%d" % (d+1, a+1, hr)])
        for s_ in seqs: p(s_)
    for k in range(5): p("ds_write_b64 v31, %s offset:%d" % (V(E+2*k, 2), 256*k))
    p("s_waitcnt lgkmcnt(0)\ns_barrier")
    ES = 14
    es = [T, T+2, T+4, T+6, T+8, T+10, E, E+2]
    p("s_cmp_eq_u32 s%d, 3\ns_cbranch_scc1 L_ssm_s1" % sW)
    p("v_add_u32 v32, 0x%x, v%d" % (EX, TS+6))
    for g in range(8): p("ds_read_b64 %s, v32 offset:%d" % (V(es[g], 2), 1280*g))
    cur = es[0]
    for g in range(1, 8):
        d = E+4 + 2*(g & 1); p(cfma(d, TS, cur, es[g])); cur = d
    p("v_min_u32 v%d, -2, v%d\nv_min_u32 v%d, -2, v%d" % (cur, cur, cur+1, cur+1))
    p("buffer_store_dwordx2 %s, v%d, %s, s47 offen sc1" % (V(cur, 2), TS+6, S(SC)))
    p("L_ssm_s1:")
    stamp(p, 3)
    for k in range(5):
        c = PR+4*k+2
        for t in range(0, 16, 2):
            sq = []
            for tt in (t, t+1):
                ur, ui = U+32*k+tt, U+32*k+16+tt; tm = 1 + 2*(tt & 1)
                sq.append(["v_mul_f32 v%d, v%d, v%d" % (tm, ui, c+1), "v_mul_f32 v%d, v%d, v%d" % (ui, ui, c),
                           "v_fmac_f32 v%d, v%d, v%d" % (ui, ur, c+1), "v_fma_f32 v%d, v%d, v%d, -v%d" % (ur, ur, c, tm)])
            for q in range(4): p([sq[0][q], sq[1][q]])
    p("s_cmp_eq_u32 s%d, 3\ns_cbranch_scc1 L_ssm_s2" % sW)
    p("s_lshl_b32 s14, s%d, 6\nv_mov_b32 v1, s14\ns_mov_b32 s69, 0\nL_ssm_p0:\nglobal_load_dword v2, v1, s[42:43] sc1\ns_add_u32 s69, s69, 1\ns_lshr_b32 s68, s69, 14\ns_waitcnt vmcnt(0)\nv_readfirstlane_b32 s14, v2\ns_max_u32 s14, s14, s68\ns_cmp_lt_u32 s14, 16\ns_cbranch_scc1 L_ssm_p0" % sG)
    cr = [14, 16, 18, 20, 34, 36, 38, 10, 2, E+8, E+10] + [PR+4*k+2 for k in range(4)]
    p("s_sub_u32 s14, s47, %d\nL_ssm_p1:\nv_add_u32 v1, s14, v%d" % (15*2048, TS+6))
    for t in range(15):
        p("buffer_load_dwordx2 %s, v1, %s, 0 offen sc1\nv_add_u32 v1, 2048, v1" % (V(cr[t], 2), S(SC)))
    p("s_waitcnt vmcnt(0)\nv_max_u32 v1, v%d, v%d" % (cr[0], cr[0]+1))
    for t in range(1, 15): p("v_max3_u32 v1, v1, v%d, v%d" % (cr[t], cr[t]+1))
    p("v_cmp_eq_u32 vcc, -1, v1\ns_add_u32 s69, s69, 1\ns_cmp_lt_u32 s69, 0x40000\ns_cselect_b64 s[12:13], -1, 0\ns_and_b64 vcc, vcc, s[12:13]\ns_cbranch_scc1 L_ssm_p1")
    cur = cr[0]
    for t in range(1, 15):
        d = E+4 + 2*(t & 1); p(cfma(d, TS+2, cur, cr[t])); cur = d
    for g in range(8):
        p(cmul(14+2*(g & 1), cur, TS+4, 18)); p("ds_write_b64 v32, %s offset:%d" % (V(14+2*(g & 1), 2), 1280*g))
        if g < 7:
            d = E+4 + (2 if cur == E+4 else 0); p(cfma(d, TS, cur, es[g])); cur = d
    p("L_ssm_s2:\ns_waitcnt lgkmcnt(0)\ns_barrier")
    stamp(p, 4)
    for k in range(5): p("ds_read_b64 %s, v31 offset:%d" % (V(E+2*k, 2), 256*k))
    p("s_lshl_b32 s14, s%d, 12\ns_add_u32 s14, s14, 0x%x" % (sW, XA))
    p("v_and_b32 v1, 31, v0\nv_bfe_u32 v2, v0, 1, 2\nv_lshlrev_b32 v3, 1, v6\nv_xor_b32 v2, v2, v3\nv_lshlrev_b32 v1, 6, v1\nv_lshl_add_u32 v1, v2, 4, v1\nv_add_u32 v14, s14, v1\nv_xor_b32 v15, 16, v14")
    p("v_bfe_u32 v1, v0, 2, 2\nv_lshl_add_u32 v1, v6, 3, v1\nv_lshlrev_b32 v1, 6, v1\nv_and_b32 v2, 1, v0\nv_lshlrev_b32 v2, 1, v2\nv_bfe_u32 v3, v0, 4, 1\nv_add_u32 v2, v2, v3")
    p("v_bfe_u32 v3, v0, 3, 1\nv_xor_b32 v2, v2, v3\nv_lshl_add_u32 v1, v2, 4, v1\nv_bfe_u32 v3, v0, 1, 1\nv_lshl_add_u32 v1, v3, 3, v1\nv_add_u32 v16, s14, v1\nv_xor_b32 v17, 32, v16\nv_add_u32 v17, 256, v17")
    p("s_waitcnt lgkmcnt(0)\ns_barrier")
    HS = 0
    for k in range(5):
        a = PR+4*k
        for t in range(16):
            ur, ui = U+32*k+t, U+32*k+16+t
            hr, hi_ = (E+2*k, E+2*k+1) if t == 0 else (ur-1, ui-1)
            p(["v_fmac_f32 v%d, v%d, v%d" % (ur, a, hr), "v_fmac_f32 v%d, v%d, v%d" % (ui, a, hi_),
               "v_fma_f32 v%d, -v%d, v%d, v%d" % (ur, a+1, hi_, ur), "v_fmac_f32 v%d, v%d, v%d" % (ui, a+1, hr)])
        b = U+32*k
        for q in range(8): p("v_cvt_pk_bf16_f32 v%d, v%d, v%d" % (b+q, b+2*q, b+2*q+1))
        for q in range(8): p("v_cvt_pk_bf16_f32 v%d, -v%d, -v%d" % (b+16+q, b+16+2*q, b+16+2*q+1))
        p("ds_write_b128 v14, %s\nds_write_b128 v15, %s\nds_write_b128 v14, %s offset:2048\nds_write_b128 v15, %s offset:2048" % (V(b), V(b+4), V(b+16), V(b+20)))
        for comp in range(2):
            for jl in range(2 if k < 4 else 1):
                h = HS + comp*36 + 4*(2*k+jl)
                p("ds_read_b64_tr_b16 %s, v16 offset:%d\nds_read_b64_tr_b16 %s, v17 offset:%d" % (A(h, 2), comp*2048+jl*1024, A(h+2, 2), comp*2048+jl*1024))
    ACC = [[96, 112], [128, 144]]; PK = 160
    mf = []
    for dp in range(9):
        for kk in range(18):
            for u in range(2):
                n = len(mf); c = V(ACC[dp & 1][u], 16)
                mf.append("v_mfma_f32_32x32x16_bf16 %s, %s, %s, %s" % (c, A(FB+4*(n % NFB)), A(HS+4*kk), c if kk else "0"))
    G = Gaps(mf)
    def rd2(n):
        dp, r = divmod(n, 36); kk, u = divmod(r, 2); comp, j = divmod(kk, 9)
        return ["ds_read_b128 %s, v%d offset:%d" % (A(FB+4*(n % NFB)), RC+(dp+9) % 4, comp*18432+u*9216+32*j)]
    avoid = {}; ep = {}
    for dp in range(9):
        g = 36*dp; st = dp+9
        if dp < 8: G.add(g, "pre", WaitV("st%d" % (st+1))); G.add(g, "pre", "s_barrier")
        if st+3 < 18:
            for i in range(9):
                a, b = dma(st+3, i); G.add(g+1+3*i, "pre", a); G.add(g+1+3*i, "vm", b)
        if dp:
            fr = epilogue_items(ACC[(dp-1) & 1], PK); ep[dp] = fr
            G.add(g+2, "pre", "s_mov_b32 s%d, 0x%x" % (sST, (dp-1)*65536))
            for f in range(4): G.add(g+12+6*f, "vm", fr[f][1], "ps"); avoid[g+12+6*f] = 0
    pro = place_reads(G, 324, rd2, L, avoid, 2, 4)
    for dp in ep:
        for f in range(4): G.spread(ep[dp][f][0], 36*dp+7+6*f, 36*dp+12+6*f)
    p("s_waitcnt vmcnt(0) lgkmcnt(0)")
    stamp(p, 5)
    p(pro); p(WaitL("f3"))
    G.emit(p)
    stamp(p, 6)
    fr = epilogue_items(ACC[0], PK)
    p("s_mov_b32 s%d, 0x%x" % (sST, 8*65536))
    for f in range(4): p(fr[f][0]); p(fr[f][1], "ps")
    stamp_flush(p, 8)
    p("s_endpgm")

def main_kernel():
    p = Prog(); entry(p)
    p("s_cmp_eq_u32 s%d, 3\ns_cbranch_scc1 L_ssm" % sQ)
    n0 = len(p.items)
    ffn(p); t1 = p.finish()
    if OPT.get("verbose"): print("ffn", p.stats, file=sys.stderr)
    q = Prog(); entry(q); q("s_cmp_eq_u32 s%d, 3\ns_cbranch_scc1 L_ssm" % sQ)
    ssm(q); t2 = q.finish()
    if OPT.get("verbose"): print("ssm", q.stats, file=sys.stderr)
    t2 = t2[t2.index("L_ssm:"):]
    return t1 + t2 + "L_code_end:\n"

def reduce_kernel():
    p = Prog()
    p("s_cmp_ge_u32 s2, 576\ns_cbranch_scc0 L_rgo\ns_endpgm\nL_rgo:")
    p("s_load_dwordx2 s[16:17], s[0:1], 0\ns_load_dwordx2 s[32:33], s[0:1], 64\ns_load_dwordx2 s[40:41], s[0:1], 96\ns_load_dwordx2 s[44:45], s[0:1], 112")
    p("v_lshrrev_b32 v1, 6, v0\nv_and_b32 v0, 63, v0\nv_readfirstlane_b32 s3, v1")
    p("s_mul_i32 s4, s2, 7282\ns_lshr_b32 s4, s4, 16\ns_mul_i32 s5, s4, 9\ns_sub_u32 s5, s2, s5")
    assert all((n*7282) >> 16 == n//9 for n in range(576))
    p("s_lshl_b32 s6, s2, 16\ns_lshl_b32 s7, s3, 10\ns_add_u32 s6, s6, s7\nv_lshlrev_b32 v8, 4, v0\nv_add_u32 v8, s6, v8")
    p("v_bfe_u32 v5, v0, 2, 1\nv_lshlrev_b32 v5, 4, v5\nv_bfe_u32 v6, v0, 3, 2\nv_lshl_add_u32 v5, v6, 2, v5\nv_and_b32 v6, 3, v0\nv_add_u32 v5, v5, v6")
    p("s_lshl_b32 s15, s4, 5\nv_add_u32 v5, s15, v5\nv_lshrrev_b32 v6, 5, v0")
    p("s_lshl_b32 s7, s5, 2\ns_add_u32 s7, s7, s3\ns_lshl_b32 s7, s7, 4\nv_lshl_add_u32 v7, v6, 2, s7")
    p("s_waitcnt lgkmcnt(0)")
    srd(p, SWS, 44, 0x10000000); srd(p, SX, 16, 2048*1152); srd(p, SA, 32, 1152); srd(p, SB, 40, 2048*2304)
    for s in range(16):
        p("s_mov_b32 s8, %d\nbuffer_load_dwordx4 %s, v8, %s, s8 offen" % (4096*s, V(32+4*s), S(SWS)))
    p("v_lshlrev_b32 v1, 3, v5\nv_add_u32 v1, 0x%x, v1\nbuffer_load_dwordx2 v[10:11], v1, %s, 0 offen" % (STATS, S(SWS)))
    p("v_mul_u32_u24 v1, 576, v5\nv_add_u32 v1, v1, v7\nv_lshlrev_b32 v2, 1, v1\nv_lshlrev_b32 v9, 2, v1\nv_lshlrev_b32 v3, 1, v7")
    p("buffer_load_dwordx2 v[12:13], v2, %s, 0 offen\nbuffer_load_dwordx2 v[14:15], v2, %s, 0 offen offset:16" % (S(SX), S(SX)))
    p("buffer_load_dwordx2 v[16:17], v3, %s, 0 offen\nbuffer_load_dwordx2 v[18:19], v3, %s, 0 offen offset:16" % (S(SA), S(SA)))
    p("s_mov_b32 s10, 0x3f80\ns_mov_b32 s11, 0x3f800000\ns_mov_b32 s15, 0xffff0000")
    for i in range(8): p("v_mov_b32 v%d, 0" % (20+i))
    for s in range(16):
        for q in range(4):
            p("v_dot2c_f32_bf16 v%d, s10, v%d\nv_dot2c_f32_bf16 v%d, s11, v%d" % (20+2*q, 32+4*s+q, 21+2*q, 32+4*s+q))
    p("v_rcp_f32 v11, v11\nv_mov_b32 v4, 0x%x" % f2u(-1/LOG2E))
    for q in range(4):
        x, d = 12+q, 16+q
        p("v_lshlrev_b32 v28, 16, v%d\nv_and_b32 v29, s15, v%d\nv_sub_f32 v30, v28, v10\nv_sub_f32 v31, v29, v10\nv_cvt_pk_bf16_f32 v30, v30, v31" % (x, x))
        p("v_and_b32 v31, s15, v30\nv_lshlrev_b32 v30, 16, v30\nv_mul_f32 v30, v30, v11\nv_mul_f32 v31, v31, v11\nv_cvt_pk_bf16_f32 v30, v30, v31")
        p("v_and_b32 v31, s15, v30\nv_lshlrev_b32 v30, 16, v30\nv_lshlrev_b32 v1, 16, v%d\nv_and_b32 v2, s15, v%d\nv_mul_f32 v30, v30, v1\nv_mul_f32 v31, v31, v2\nv_cvt_pk_bf16_f32 v30, v30, v31" % (d, d))
        p("v_and_b32 v31, s15, v30\nv_lshlrev_b32 v30, 16, v30\nv_add_f32 v28, v28, v30\nv_add_f32 v29, v29, v31")
        p("v_fma_f32 v%d, v%d, v4, v28\nv_fma_f32 v%d, v%d, v4, v29" % (20+2*q, 20+2*q, 21+2*q, 21+2*q))
    p("buffer_store_dwordx4 v[20:23], v9, %s, 0 offen\nbuffer_store_dwordx4 v[24:27], v9, %s, 0 offen offset:32" % (S(SB), S(SB)))
    p("s_endpgm")
    return p.finish()

def build():
    K1 = NAME + "_kernel"; K2 = "reduce_kernel"
    ex = "  .amdhsa_float_denorm_mode_32 3\n"
    s = "; @launch kernel=%s grid=(256,1,1) block=(256,1,1) lds=163840\n; @launch kernel=%s grid=(576,1,1) block=(256,1,1) lds=0\n" % (K1, K2)
    s += ".amdgcn_target \"amdgcn-amd-amdhsa--gfx950\"\n.text\n" + head(K1) + main_kernel() + head(K2) + reduce_kernel()
    s += ".section .rodata,\"a\"\n.p2align 6\n" + kd(K1, 512, 256, 102, ex) + ".p2align 6\n" + kd(K2, 96, 96, 102, ex)
    return s
if __name__ == "__main__":
    out = sys.argv[1]
    for a in sys.argv[2:]:
        k, v = a.split("="); OPT[k] = int(v) if v.lstrip("-").isdigit() else v
    open(out, "w").write(build())
```

```python
import sys, struct
from fw import *
from asmlib import NAME, kd, head
def f2u(x): return struct.unpack("<I", struct.pack("<f", x))[0]
LOG2E = 1.4426950408889634
CARRY = 0x2800000; STATS = 0x2900000; STAMP = 0x8000000
OPT = dict(stamp=0)
sW, sM, sQ, sG, sS = 3, 4, 5, 6, 7
SX, SA, SB, SWS, SC = 48, 52, 56, 60, 64
sWB = 8
sOFF = 9
sST = 10
XN = 112
def srd(p, d, ptr, size):
    p("s_mov_b32 s%d, s%d\ns_mov_b32 s%d, s%d\ns_mov_b32 s%d, 0x%x\ns_mov_b32 s%d, 0x20000" % (d, ptr, d+1, ptr+1, d+2, size, d+3))
def S(d): return "s[%d:%d]" % (d, d+3)
def V(a, n=4): return "v[%d:%d]" % (a, a+n-1)
def A(a, n=4): return "a[%d:%d]" % (a, a+n-1)
def TM(): return "s_memtime" if OPT["stamp"] == 2 else "s_memrealtime"
def stamp(p, i):
    if OPT["stamp"]:
        p("%s s[%d:%d]" % (TM(), 70+2*i, 71+2*i))
def stamp_flush(p, n):
    if not OPT["stamp"]: return
    p("s_waitcnt vmcnt(0)")
    stamp(p, n-1)
    p("s_waitcnt lgkmcnt(0)")
    p("s_lshl_b32 s11, s2, 2\ns_add_u32 s11, s11, s%d\ns_lshl_b32 s11, s11, 7\ns_add_u32 s11, s11, 0x%x\nv_mov_b32 v1, 0" % (sW, STAMP))
    for i in range(12):
        p("v_mov_b32 v2, s%d\nv_mov_b32 v3, s%d\nbuffer_store_dwordx2 v[2:3], v1, %s, s11 offen offset:%d" % (70+2*i, 71+2*i, S(SWS), 8*i))

def entry(p):
    p("s_cmp_ge_u32 s2, 256\ns_cbranch_scc0 L_go\ns_endpgm\nL_go:")
    stamp(p, 0)
    p("s_load_dwordx16 s[16:31], s[0:1], 0\ns_load_dwordx8 s[32:39], s[0:1], 64\ns_load_dwordx4 s[40:43], s[0:1], 96\ns_load_dwordx2 s[44:45], s[0:1], 112")
    p("s_getpc_b64 s[12:13]\nL_pc:")
    p("v_lshrrev_b32 v1, 6, v0\nv_and_b32 v0, 63, v0\nv_readfirstlane_b32 s%d, v1" % sW)
    p("s_lshr_b32 s11, s2, 3\ns_and_b32 s%d, s11, 3\ns_bfe_u32 s%d, s2, 0x20001" % (sQ, sG))
    p("s_and_b32 s14, s2, 1\ns_lshl_b32 s14, s14, 3\ns_lshr_b32 s%d, s11, 2\ns_add_u32 s%d, s%d, s14" % (sM, sM, sM))
    p("s_lshl_b32 s14, s11, 2\ns_add_u32 s14, s14, s%d\ns_mul_i32 s14, s14, 5" % sW)
    p("v_min_u32 v1, 4, v0\nv_add_u32 v1, s14, v1\nv_lshlrev_b32 v1, 7, v1\nv_min_u32 v1, L_code_end-L_pc-4, v1")
    p("v_mov_b32 v3, s13\nv_add_co_u32 v2, vcc, s12, v1\nv_addc_co_u32 v3, vcc, 0, v3, vcc")
    p("global_load_dword v44, v[2:3], off", tag="pf")
    p("v_bfe_u32 v5, v0, 2, 1\nv_lshlrev_b32 v5, 4, v5\nv_bfe_u32 v6, v0, 3, 2\nv_lshl_add_u32 v5, v6, 2, v5\nv_and_b32 v6, 3, v0\nv_add_u32 v5, v5, v6")
    p("s_lshl_b32 s14, s%d, 2\ns_add_u32 s14, s14, s%d\ns_lshl_b32 s15, s14, 5\nv_add_u32 v5, s15, v5\nv_lshrrev_b32 v6, 5, v0" % (sM, sW))
    p("v_bfe_u32 v1, v0, 3, 2\nv_lshl_add_u32 v1, v6, 4, v1\nv_add_u32 v1, s15, v1\nv_mul_u32_u24 v1, 1152, v1")
    p("v_and_b32 v2, 7, v0\nv_lshrrev_b32 v3, 4, v0\nv_xor_b32 v2, v2, v3\nv_lshl_add_u32 v40, v2, 4, v1\nv_xor_b32 v2, 4, v2\nv_lshl_add_u32 v41, v2, 4, v1")
    p("v_add_u32 v42, %d, v40\nv_add_u32 v43, %d, v41\nv_add_u32 v41, %d, v41" % (2*3584, 3*3584, 3584))
    p("s_mul_i32 s47, s%d, 36864" % sW)
    p("s_waitcnt lgkmcnt(0)")
    stamp(p, 8)
    srd(p, SX, 16, 2048*1152)
    for c in range(9):
        p("s_add_u32 m0, s47, %d\ns_movk_i32 s%d, %d" % (4096*c, sOFF, 128*c))
        for i in range(4):
            p("buffer_load_dwordx4 v%d, %s, s%d offen offset:%d lds" % (40+i, S(SX), sOFF, 1024*i), tag="x%d" % c)
    p("v_and_b32 v1, 31, v0\nv_bfe_u32 v2, v0, 1, 3\nv_xor_b32 v2, v2, v6\nv_lshlrev_b32 v3, 7, v1")
    for jj in range(4): p("v_xor_b32 v7, %d, v2\nv_lshl_add_u32 v%d, v7, 4, v3\nv_add_u32 v%d, s47, v%d" % (2*jj, 32+jj, 36+jj, 32+jj))
    p("v_min_u32 v1, 53, v0\nv_mul_u32_u24 v7, 86, v1\nv_lshrrev_b32 v7, 8, v7\nv_mul_u32_u24 v2, 3, v7\nv_sub_u32 v31, v1, v2\ns_and_b32 s12, s14, 31")
    srd(p, SWS, 44, 0x10000000)
    p("s_mul_i32 s15, s14, %d\nv_lshlrev_b32 v8, 4, v0\nv_add_u32 v8, s15, v8" % (9*65536))

def stats(p, after_bar, scale):
    p("v_mov_b32 v9, 0\nv_mov_b32 v10, 0\nv_mov_b32 v11, 0\nv_mov_b32 v12, 0\ns_mov_b32 s14, 0x3f803f80")
    def dots(c):
        for x in range(XN+16*c, XN+16*c+16):
            p("v_dot2c_f32_bf16 v%d, s14, v%d\nv_dot2c_f32_bf16 v%d, v%d, v%d" % (9+(x & 1), x, 11+(x & 1), x, x))
    stamp(p, 9)
    for c in range(9):
        p(WaitV("x%d" % c))
        if c == 0: stamp(p, 10)
        for jj in range(4): p("ds_read_b128 %s, v%d offset:%d" % (V(XN+16*c+4*jj), 36+jj, 4096*c), tag="xr%d" % c)
        if c: p(WaitL("xr%d" % (c-1))); dots(c-1)
    p(WaitL("xr8")); p("s_barrier")
    stamp(p, 11)
    p(after_bar)
    dots(8)
    p("v_add_f32 v9, v9, v10\nv_add_f32 v11, v11, v12\nv_mov_b32 v10, v9\nv_mov_b32 v12, v11")
    p("v_permlane32_swap_b32 v9, v10\nv_permlane32_swap_b32 v11, v12\nv_add_f32 v9, v9, v10\nv_add_f32 v11, v11, v12")
    p("v_mul_f32 v9, 0x%x, v9\nv_mul_f32 v11, 0x%x, v11" % (f2u(1/576.), f2u(1/576.)))
    p("v_fma_f32 v12, -v9, v9, v11\nv_max_f32 v12, 0, v12\nv_cvt_pk_bf16_f32 v10, v9, v12")
    p("v_lshlrev_b32 v9, 16, v10\nv_and_b32 v12, 0xffff0000, v10\nv_add_f32 v12, 0x%x, v12" % f2u(1e-5))
    p("v_cvt_pk_bf16_f32 v12, v12, v12\nv_and_b32 v12, 0xffff0000, v12\nv_sqrt_f32 v12, v12")
    p("v_cvt_pk_bf16_f32 v12, v12, v12\nv_and_b32 v12, 0xffff0000, v12\nv_rcp_f32 v10, v12")
    if scale != 1.0: p("v_mul_f32 v10, 0x%x, v10" % f2u(scale))
    p("v_mul_f32 v11, v10, v9\nv_xor_b32 v11, 0x80000000, v11\ns_mov_b32 s15, 0xffff0000")
def center(j, t, pk=False):
    o = []
    for h in range(2):
        a, b = XN+4*j+2*h, XN+4*j+2*h+1
        o += ["v_lshlrev_b32 v%d, 16, v%d" % (t, a), "v_and_b32 v%d, s15, v%d" % (t+1, a), "v_lshlrev_b32 v%d, 16, v%d" % (t+2, b), "v_and_b32 v%d, s15, v%d" % (t+3, b)]
        if pk: o += ["v_pk_fma_f32 %s, %s, v[10:11], v[10:11] op_sel:[0,0,1] op_sel_hi:[1,0,1]" % (V(t+k, 2), V(t+k, 2)) for k in (0, 2)]
        else: o += ["v_fma_f32 v%d, v%d, v10, v11" % (t+k, t+k) for k in range(4)]
        o += ["v_cvt_pk_bf16_f32 v%d, v%d, v%d" % (a, t, t+1), "v_cvt_pk_bf16_f32 v%d, v%d, v%d" % (b, t+2, t+3)]
    return o

def epilogue_items(acc, pk):
    fr = []
    for u in range(2):
        for h in range(2):
            f = 2*u+h
            cv = ["v_cvt_pk_bf16_f32 v%d, v%d, v%d" % (pk+4*f+q, acc[u]+8*h+2*q, acc[u]+8*h+2*q+1) for q in range(4)]
            st = "buffer_store_dwordx4 %s, v8, %s, s%d offen offset:%d%s" % (V(pk+4*f), S(SWS), sST, 1024*f, OPT.get("stflav", " sc1"))
            fr.append((cv, st))
    return fr

def place_reads(G, nfr, rd, L, avoid, maxper, wgrp, gate=None):
    pro = []
    q = []
    for n in range(min(L, nfr)): pro += [I(x, "f%d" % n) for x in rd(n)]
    nxt = L
    for g in range(nfr):
        while nxt < nfr and nxt <= g + L and (gate is None or gate(nxt) <= g): q += [I(x, "f%d" % nxt) for x in rd(nxt)]; nxt += 1
        lim = avoid.get(g, maxper)
        k = 0
        while q and k < lim:
            G.add(g, "ds", q.pop(0)); k += 1
        if g % wgrp == wgrp-1 and g+1 < nfr:
            G.g[g]["pre"].append(WaitL("f%d" % min(g+wgrp, nfr-1)))
    assert not q
    return pro

def ffn(p):
    DV = 13
    RB = 19
    DV2 = 25
    T = 32
    ACC = [[40, 56], [72, 88]]
    HV = 104
    FB = 0; NFB = 12
    HA = 48
    p("s_mul_i32 s%d, s%d, 3\ns_add_u32 s%d, s%d, s%d" % (sS, sG, sS, sS, sQ))
    srd(p, SA, 36, 576*9216); srd(p, SB, 38, 4608*1152)
    p("s_lshl_b32 s14, s%d, 12\nv_add_u32 v8, s14, v8" % sS)
    p("v_lshrrev_b32 v1, 3, v0\nv_and_b32 v2, 7, v0\nv_lshlrev_b32 v3, 1, v1\nv_and_b32 v3, 4, v3\nv_xor_b32 v2, v2, v3\nv_lshlrev_b32 v2, 4, v2")
    p("s_mul_i32 s14, s%d, 48\nv_add_u32 v1, s14, v1\nv_mul_u32_u24 v3, 9216, v1\ns_mul_i32 s14, s%d, 768\nv_add3_u32 v%d, v3, v2, s14" % (sW, sS, DV))
    p("v_mul_u32_u24 v3, 1152, v1\ns_mul_i32 s14, s%d, %d\nv_add3_u32 v%d, v3, v2, s14" % (sS, 384*1152, DV2))
    for i in range(1, 6):
        p("v_add_u32 v%d, %d, v%d" % (DV+i, i*8*9216 - (i % 3)*1024, DV))
    p("s_mul_i32 s%d, s%d, 6144" % (sWB, sW))
    def dma(st, i):
        pre = []
        if st < 18: so = (st % 3)*192*9216 + (st//3)*128; dv, sr = DV, SA
        else: so = ((st-18) % 2)*192*1152 + ((st-18)//2)*128; dv, sr = DV2, SB
        if i == 0: pre.append("s_mov_b32 s%d, 0x%x" % (sOFF, so))
        if i % 3 == 0: pre.append("s_add_u32 m0, s%d, 0x%x" % (sWB, (st % 6)*24576 + i*1024))
        return pre, I("buffer_load_dwordx4 v%d, %s, s%d offen offset:%d lds" % (dv+i, S(sr), sOFF, (i % 3)*1024), "st%d" % st)
    def dmas(st, i0, i1):
        o = []
        for i in range(i0, i1):
            a, b = dma(st, i); o += a + [b]
        return o
    p("s_mul_i32 s13, s12, 18\nv_add_u32 v1, s13, v7\nv_mul_u32_u24 v1, 9216, v1\nv_lshl_add_u32 v1, v31, 7, v1\ns_mul_i32 s14, s%d, 768\nv_add_u32 v104, s14, v1" % sS)
    p("buffer_load_dword v4, v104, %s, 0 offen" % S(SA), tag="pf") if OPT.get("pf", 1) else None
    p("s_mul_i32 s13, s12, 108\ns_mul_i32 s14, s%d, 3456\ns_add_u32 s13, s13, s14\nv_min_u32 v1, 53, v0\nv_add_u32 v1, s13, v1\nv_lshlrev_b32 v105, 7, v1\nv_add_u32 v106, %d, v105" % (sS, 54*128))
    for i in range(1, 6):
        p("v_add_u32 v%d, %d, v%d" % (DV2+i, i*8*1152 - (i % 3)*1024, DV2))
    p("v_and_b32 v1, 15, v0\nv_lshrrev_b32 v1, 2, v1\nv_lshl_add_u32 v1, v6, 3, v1\nv_lshlrev_b32 v1, 7, v1")
    p("v_and_b32 v2, 3, v0\nv_lshl_add_u32 v1, v2, 3, v1\nv_bfe_u32 v2, v0, 4, 1\nv_lshl_add_u32 v1, v2, 5, v1\nv_bfe_u32 v2, v0, 3, 1\nv_lshl_add_u32 v%d, v2, 6, v1" % RB)
    p("v_xor_b32 v%d, 64, v%d" % (RB+1, RB))
    for k in range(2, 6): p("v_add_u32 v%d, 0x%x, v%d" % (RB+k, (k//2)*49152, RB+(k & 1)))
    stats(p, dmas(0, 0, 6), -LOG2E)
    stamp(p, 1)
    p("v_lshlrev_b32 v1, 3, v5\nv_add_u32 v1, 0x%x, v1\nv_mov_b32 v2, v9\nv_mov_b32 v3, v12\nbuffer_store_dwordx2 v[2:3], v1, %s, 0 offen" % (STATS, S(SWS)))
    RB2 = XN
    PK = XN+8
    HL = XN+24
    def hreg(U):
        if U == 0: return "v", HV
        if U >= 10: return "v", HL + 8*(U-10)
        return "a", HA + 8*(U-1)
    mf = []
    for pr in range(6):
        for j in range(36):
            for u in range(2):
                n = len(mf); c = V(ACC[pr & 1][u], 16)
                mf.append("v_mfma_f32_32x32x16_bf16 %s, %s, %s, %s" % (c, A(FB+4*(n % NFB)), V(XN+4*j), c if j else "0"))
    for dp in range(9):
        for kk in range(24):
            k, b = hreg(kk//2); hb = "%s[%d:%d]" % (k, b+4*(kk & 1), b+4*(kk & 1)+3)
            for u in range(2):
                n = len(mf); c = V(ACC[dp & 1][u], 16)
                mf.append("v_mfma_f32_32x32x16_bf16 %s, %s, %s, %s" % (c, A(FB+4*(n % NFB)), hb, c if kk else "0"))
    G = Gaps(mf); N = len(mf)
    def rd(n):
        st, r = divmod(n, 24); jj, u = divmod(r, 2); sl = st % 6; fb = FB+4*(n % NFB)
        base = (RB if st < 18 else RB2) + 2*(sl//2) + u
        off = (sl & 1)*24576 + jj*2048; dq = 512 if st < 18 else 1024
        return ["ds_read_b64_tr_b16 %s, v%d offset:%d" % (A(fb, 2), base, off), "ds_read_b64_tr_b16 %s, v%d offset:%d" % (A(fb+2, 2), base, off+dq)]
    avoid = {}
    for st in range(36):
        g = 24*st
        if st+1 < 36:
            G.add(g, "pre", WaitV("st%d" % (st+1))); G.add(g, "pre", "s_barrier")
        if st+5 < 36:
            for i in range(6):
                gg = g + 1 + 4*i
                a, b = dma(st+5, i)
                G.add(gg, "pre", a); G.add(gg, "vm", b); avoid[gg] = 1
    ep = {}
    for dp in range(8):
        g0 = 432 + 48*(dp+1)
        fr = epilogue_items(ACC[dp & 1], PK); ep[dp] = fr
        G.add(g0+2, "pre", "s_mov_b32 s%d, 0x%x" % (sST, dp*65536))
        for f in range(4):
            gg = g0 + 10 + 8*f
            G.add(gg, "vm", fr[f][1], "ps"); avoid[gg] = 0
    pro = place_reads(G, N, rd, 8, avoid, 3, 4)
    for dp in range(8):
        g0 = 432 + 48*(dp+1)
        for f in range(4): G.spread(ep[dp][f][0], g0+3+8*f, g0+10+8*f)
    K0 = 24
    if OPT.get("pf", 1):
        G.add(2, "vm", "buffer_load_dword v107, v104, %s, 0 offen offset:384" % S(SA), "pf")
        G.add(26, "vm", "buffer_load_dword v108, v105, %s, 0 offen" % S(SB), "pf")
        G.add(50, "vm", "buffer_load_dword v31, v106, %s, 0 offen" % S(SB), "pf")
    G.spread(sum((center(j, T + 4*(j & 1)) for j in range(K0, 36)), []), 0, 68)
    G.spread(["v_lshlrev_b32 v1, 9, v6"] + ["v_sub_u32 v%d, v%d, v1" % (RB2+k, RB+k) for k in range(6)], 360+8, 360+40)
    def silu(pr):
        o = []
        for u in range(2):
            k, b = hreg(2*pr+u); ac = ACC[pr & 1][u]
            for g4 in range(4):
                t = T + 4*(g4 & 1); z = ac+4*g4
                ex = ["v_exp_f32 v%d, v%d" % (t+q, z+q) for q in range(4)]
                ad = ["v_add_f32 v%d, 1.0, v%d" % (t+q, t+q) for q in range(4)]
                rc = ["v_rcp_f32 v%d, v%d" % (t+q, t+q) for q in range(4)]
                mu = ["v_mul_f32 v%d, v%d, v%d" % (t+q, z+q, t+q) for q in range(4)]
                if k == "v": cv = [["v_cvt_pk_bf16_f32 v%d, v%d, v%d" % (b+2*g4+q, t+2*q, t+2*q+1)] for q in range(2)]
                else: cv = [["v_cvt_pk_bf16_f32 v%d, v%d, v%d" % (t+2*q, t+2*q, t+2*q+1), "v_accvgpr_write_b32 a%d, v%d" % (b+2*g4+q, t+2*q)] for q in range(2)]
                o.append((ex, ad, rc, mu, cv))
        r = []
        for i in range(len(o)+1):
            cur = o[i] if i < len(o) else None; prv = o[i-1] if i else None
            tail = []
            if prv: tail = prv[3][:2] + prv[4][0][:1] + prv[3][2:] + prv[4][0][1:] + prv[4][1]
            if cur:
                ex, ad, rc = cur[0], cur[1], cur[2]
                seq = [ex[0], None, ex[1], ad[0], None, ex[2], ad[1], None, ex[3], ad[2], None, rc[0], ad[3], None, rc[1], None, rc[2], None, rc[3], None]
            else: seq = []
            for x in seq:
                if x is None:
                    if tail: r.append(tail.pop(0))
                else: r.append(x)
            r += tail
        return r
    for pr in range(5): G.spread(silu(pr), 72*(pr+1)+3, 72*(pr+2)-1)
    s5 = silu(5); G.spread(s5, 432+3, 432+38)
    for j in range(K0):
        p(center(j, T + 4*(j & 1), pk=True)); p(dmas(1 + j//6, j % 6, j % 6 + 1))
    p(WaitV("st0")); p("s_barrier"); p(pro); p(WaitL("f3"))
    if OPT["stamp"]:
        G.add(72, "pre", TM()+" s[74:75]"); G.add(432, "pre", TM()+" s[76:77]"); G.add(0, "pre", TM()+" s[86:87]")
    G.emit(p)
    stamp(p, 4)
    fr = epilogue_items(ACC[0], PK)
    p("s_mov_b32 s%d, 0x%x" % (sST, 8*65536))
    for f in range(4): p(fr[f][0]); p(fr[f][1], "ps")
    stamp_flush(p, 6)
    p("s_endpgm")
    if OPT.get("verbose"):
        ld = [G.load(g) for g in range(N)]
        for b in range(0, N, 72): print("ffn gaps %d: mean %.2f max %.1f" % (b, sum(ld[b:b+72])/72, max(ld[b:b+72])), file=sys.stderr)

def cmul(d, a, b, t):
    return ["v_pk_mul_f32 %s, %s, %s op_sel:[1,1] op_sel_hi:[0,1] neg_lo:[1,0]" % (V(t, 2), V(a, 2), V(b, 2)),
            "v_pk_fma_f32 %s, %s, %s, %s op_sel_hi:[1,0,1]" % (V(d, 2), V(a, 2), V(b, 2), V(t, 2))]
def cfma(d, a, h, u):
    return ["v_pk_fma_f32 %s, %s, %s, %s op_sel_hi:[1,0,1]" % (V(d, 2), V(h, 2), V(a, 2), V(u, 2)),
            "v_pk_fma_f32 %s, %s, %s, %s op_sel:[1,1,0] op_sel_hi:[0,1,1] neg_lo:[1,0,0]" % (V(d, 2), V(h, 2), V(a, 2), V(d, 2))]
def ssm(p):
    DV = 13
    DV2 = 22
    RB = 32
    RC = 40
    TS = 44
    T = 52
    XA = 147456; PAR = XA; EX = XA + 4096
    FB = 144; NFB = 12
    p("L_ssm:"); p(Reset(v=False, l=True))
    p("s_add_u32 s%d, s%d, 12\ns_lshl_b32 s14, s%d, 12\nv_add_u32 v8, s14, v8" % (sS, sG, sS))
    p("s_cmp_ge_u32 s%d, 2\ns_cselect_b32 s%d, s24, s22\ns_cselect_b32 s%d, s25, s23\ns_cselect_b32 s%d, s28, s26\ns_cselect_b32 s%d, s29, s27" % (sW, SA, SA+1, SB, SB+1))
    p("s_mov_b32 s%d, %d\ns_mov_b32 s%d, 0x20000\ns_mov_b32 s%d, %d\ns_mov_b32 s%d, 0x20000" % (SA+2, 576*1152, SA+3, SB+2, 576*1152, SB+3))
    p("s_mul_i32 s46, s%d, 144" % sG)
    p("s_lshl_b32 s14, s%d, 6\nv_add_u32 v1, s14, v0\nv_min_u32 v1, 143, v1\nv_lshlrev_b32 v%d, 3, v1\nv_add_u32 v1, s46, v1\nv_lshlrev_b32 v1, 1, v1" % (sW, TS+6))
    p("global_load_ushort v%d, v1, s[18:19]\nglobal_load_ushort v%d, v1, s[20:21]\nglobal_load_ushort v%d, v1, s[30:31]" % (T, T+1, T+2), tag="par")
    p("s_lshl_b32 s14, s%d, 15\ns_add_u32 s14, s14, 0x%x\ns_add_u32 s%d, s44, s14\ns_addc_u32 s%d, s45, 0\ns_mov_b32 s%d, 32768\ns_mov_b32 s%d, 0x20000" % (sG, CARRY, SC, SC+1, SC+2, SC+3))
    p("s_lshl_b32 s47, s%d, 11\nv_mov_b32 v2, -1\nv_mov_b32 v3, -1\nbuffer_store_dwordx2 v[2:3], v%d, %s, s47 offen sc1" % (sM, TS+6, S(SC)), tag="clr")
    p("v_lshrrev_b32 v1, 3, v0\nv_add_u32 v1, s46, v1\nv_mul_u32_u24 v1, 1152, v1\nv_and_b32 v2, 7, v0\nv_lshrrev_b32 v3, 4, v0\nv_xor_b32 v2, v2, v3")
    p("s_and_b32 s14, s%d, 1\ns_lshl_b32 s14, s14, 2\nv_xor_b32 v2, s14, v2\nv_lshl_add_u32 v3, v2, 4, v1\nv_xor_b32 v2, 4, v2\nv_lshl_add_u32 v2, v2, 4, v1" % sW)
    p("s_mul_i32 s14, s%d, 72\ns_cmp_ge_u32 s%d, 2\ns_cselect_b32 s15, 160, 0\ns_sub_i32 s14, s14, s15\ns_cmp_eq_u32 s%d, 2\ns_cselect_b32 s15, 144, 0\ns_add_i32 s15, s15, s14" % (sW, sW, sW))
    p("s_mul_i32 s14, s14, 1152\ns_mul_i32 s15, s15, 1152")
    for i in range(9):
        p("s_add_i32 s11, s%d, %d\nv_add_u32 v%d, s11, v%d" % (15 if i < 2 else 14, i*8*1152, DV+i, 2 if i & 1 else 3))
    p("s_mul_i32 s%d, s%d, 9216" % (sWB, sW))
    def dma(st, i):
        pre = []
        if st < 9: so = st*128; dv, sr = DV, SA
        else: so = (st-9)*64*1152; dv, sr = DV2, SB
        if i == 0: pre.append("s_mov_b32 s%d, 0x%x" % (sOFF, so))
        pre.append("s_add_u32 m0, s%d, 0x%x" % (sWB, (st % 4)*36864 + i*1024))
        return pre, I("buffer_load_dwordx4 v%d, %s, s%d offen lds" % (dv+i, S(sr), sOFF), "st%d" % st)
    def dmas(st, i0, i1):
        o = []
        for i in range(i0, i1):
            a, b = dma(st, i); o += a + [b]
        return o
    p("s_lshr_b32 s13, s12, 2\ns_lshl_b32 s13, s13, 1\ns_and_b32 s14, s12, 1\ns_add_u32 s13, s13, s14\ns_mul_i32 s14, s13, 9\ns_add_u32 s14, s14, s46\ns_mul_i32 s14, s14, 1152")
    p("v_min_u32 v1, 62, v0\nv_mul_u32_u24 v2, 37, v1\nv_lshrrev_b32 v2, 8, v2\nv_lshl_add_u32 v1, v2, 1, v1\nv_lshlrev_b32 v1, 7, v1\nv_add_u32 v1, s14, v1")
    if OPT.get("pf", 1): p("buffer_load_dword v4, v1, %s, 0 offen" % S(SA), tag="pf")
    p("v_min_u32 v1, 17, v0\nv_lshrrev_b32 v2, 1, v1\nv_mul_u32_u24 v2, 7, v2\nv_add3_u32 v1, v1, v2, 7\nv_lshlrev_b32 v1, 7, v1\nv_add_u32 v64, s14, v1")
    p("s_mul_i32 s14, s13, 36\nv_add_u32 v1, s14, v7\nv_mul_u32_u24 v1, 1152, v1\nv_lshl_add_u32 v1, v31, 7, v1\ns_lshl_b32 s14, s%d, 8\nv_add_u32 v65, s14, v1\nv_add_u32 v66, %d, v65" % (sG, 18*1152))
    assert all((n*3641) >> 16 == n//18 for n in range(576))
    p("s_and_b32 s14, s%d, 1\ns_mul_i32 s14, s14, %d\ns_lshl_b32 s15, s46, 1\ns_add_u32 s14, s14, s15" % (sW, 32*1152))
    for i in range(9):
        p("v_add_u32 v1, %d, v0\nv_mul_u32_u24 v2, 3641, v1\nv_lshrrev_b32 v2, 16, v2\nv_mul_u32_u24 v3, 18, v2\nv_sub_u32 v1, v1, v3" % (64*i))
        p("v_bfe_u32 v3, v2, 3, 1\nv_xor_b32 v1, v1, v3\nv_mul_u32_u24 v2, 1152, v2\nv_lshl_add_u32 v1, v1, 4, v2\nv_add_u32 v%d, s14, v1" % (DV2+i))
    p("v_and_b32 v1, 31, v0")
    p("v_mul_u32_u24 v1, 288, v1\nv_bfe_u32 v2, v0, 3, 1\nv_xor_b32 v2, v2, v6\nv_lshl_add_u32 v%d, v2, 4, v1" % RC)
    for sl in range(1, 4): p("v_add_u32 v%d, 0x%x, v%d" % (RC+sl, sl*36864, RC))
    stats(p, dmas(0, 0, 9), 1.0)
    for jj in range(4): p("v_mov_b32 v%d, v%d" % (RB+4+jj, RB+jj))
    p(dmas(1, 0, 9))
    stamp(p, 1)
    lr, li, dt = T, T+1, T+2
    p("v_lshlrev_b32 v%d, 16, v%d\nv_lshlrev_b32 v%d, 16, v%d\nv_lshlrev_b32 v%d, 16, v%d" % (lr, lr, li, li, dt, dt))
    p("v_mul_f32 v%d, 0x%x, v%d\nv_exp_f32 v%d, v%d\nv_cvt_pk_bf16_f32 v%d, v%d, v%d\nv_and_b32 v%d, 0xffff0000, v%d" % (dt, f2u(LOG2E), dt, dt, dt, dt, dt, dt, dt, dt))
    p("v_mul_f32 v1, v%d, v%d\nv_mul_f32 v2, v%d, v%d\nv_mul_f32 v1, 0x%x, v1\nv_mul_f32 v2, 0.15915494, v2\nv_exp_f32 v1, v1\nv_fract_f32 v2, v2" % (dt, lr, dt, li, f2u(LOG2E)))
    P0 = T+4
    p("v_cos_f32 v3, v2\nv_sin_f32 v4, v2\nv_mul_f32 v%d, v1, v3\nv_mul_f32 v%d, v1, v4" % (P0, P0+1))
    p("v_mul_f32 v1, v%d, v%d\nv_fmac_f32 v1, v%d, v%d\nv_rcp_f32 v1, v1\nv_add_f32 v2, -1.0, v%d\nv_mul_f32 v1, 0x%x, v1" % (lr, lr, li, li, P0, f2u(-2*LOG2E)))
    p("v_mul_f32 v3, v2, v%d\nv_fmac_f32 v3, v%d, v%d\nv_mul_f32 v4, v%d, v%d\nv_fma_f32 v4, -v2, v%d, v4" % (lr, P0+1, li, P0+1, lr, li))
    p("v_mul_f32 v%d, v3, v1\nv_mul_f32 v%d, v4, v1\nv_mov_b32 v%d, v%d\nv_mov_b32 v%d, v%d" % (P0+2, P0+3, TS+4, P0+2, TS+5, P0+3))
    p("v_lshlrev_b32 v1, 1, v%d\nv_add_u32 v1, 0x%x, v1\nds_write_b128 v1, %s" % (TS+6, PAR, V(P0)))
    def csq(d, a): return ["v_mul_f32 v1, v%d, v%d" % (a+1, a+1), "v_mul_f32 v2, v%d, v%d" % (a, a+1), "v_fma_f32 v%d, v%d, v%d, -v1" % (d, a, a), "v_add_f32 v%d, v2, v2" % (d+1)]
    p(csq(TS, P0) + csq(TS, TS) + csq(TS, TS) + csq(TS, TS) + csq(TS+2, TS) + csq(TS+2, TS+2) + csq(TS+2, TS+2))
    mf = []
    for j in range(36):
        for t in range(9):
            n = len(mf); c = A(16*t, 16)
            mf.append("v_mfma_f32_32x32x16_bf16 %s, %s, %s, %s" % (c, V(XN+4*j), A(FB+4*(n % NFB)), c if j else "0"))
    G = Gaps(mf)
    L = 10; PS = 3
    def rd(n):
        j, t = divmod(n, 9)
        return ["ds_read_b128 %s, v%d offset:%d" % (A(FB+4*(n % NFB)), RB+4+(j & 3), t*4096)]
    gate = lambda n: 36*(n//36) - L + PS
    def ring(G, st0, nst, last):
        left = []
        for k in range(nst):
            st = st0+k; g = 36*(k+1) - L + PS
            if st+1 <= last:
                G.add(g, "pre", WaitL("f%d" % (36*k+35))); G.add(g, "pre", WaitV("st%d" % (st+1))); G.add(g, "pre", "s_barrier")
            if st+4 <= last:
                for i in range(9):
                    a, b = dma(st+4, i); gg = g+1+3*i
                    if gg < len(G.mf): G.add(gg, "pre", a); G.add(gg, "vm", b)
                    else: left += a + [b]
        return left
    for i in range(9):
        a, b = dma(3, i); G.add(1+3*i, "pre", a); G.add(1+3*i, "vm", b)
    left = ring(G, 0, 9, 17)
    for st in range(8):
        for jj in range(4):
            G.add(36*st + 9*jj + 9, "va", "v_add_u32 v%d, 0x%x, v%d" % (RB+4+jj, ((st+1) % 4)*36864, RB+jj))
    if OPT.get("pf", 1):
        G.add(2, "vm", "buffer_load_dword v67, v64, %s, 0 offen" % S(SA), "pf")
        G.add(41, "vm", "buffer_load_dword v68, v65, %s, 0 offen" % S(SB), "pf")
        G.add(77, "vm", "buffer_load_dword v69, v66, %s, 0 offen" % S(SB), "pf")
    pro = place_reads(G, 324, rd, L, {}, 2, 4, gate)
    K0 = 9
    G.spread(sum((center(j, T + 4 + 4*(j & 1)) for j in range(K0, 36)), []), 0, 300)
    for j in range(K0):
        p(center(j, T+4+4*(j & 1), pk=True)); p(dmas(2, j, j+1))
    p(WaitV("st0")); p(WaitL(None)); p("s_barrier")
    p("s_cmp_lg_u32 s%d, 0\ns_cbranch_scc1 L_ssm_na" % sW)
    p("s_lshl_b32 s14, s%d, 6\ns_add_u32 s12, s42, s14\ns_addc_u32 s13, s43, 0" % sG)
    p("s_mov_b64 exec, 1\nv_mov_b32 v1, 0\nv_mov_b32 v2, 1")
    x = I("buffer_atomic_add v2, v1, s[0:3], 0"); x.text = "global_atomic_add v1, v2, s[12:13]"; x.k = "salu"; p(x)
    p("s_mov_b64 exec, -1\nL_ssm_na:")
    p(pro); p(WaitL("f3"))
    stamp(p, 8)
    G.emit(p)
    p(left)
    stamp(p, 2)
    U = 96
    PR = 64
    E = 84
    p("v_and_b32 v1, 31, v0\nv_lshlrev_b32 v2, 4, v1\nv_add_u32 v2, 0x%x, v2" % PAR)
    for k in range(5): p("ds_read_b128 %s, v2 offset:%d" % (V(PR+4*k), 512*k))
    p("s_lshl_b32 s14, s%d, 1\nv_add_u32 v3, s14, v6\nv_mul_u32_u24 v3, 1280, v3\nv_lshl_add_u32 v3, v1, 3, v3\nv_add_u32 v31, 0x%x, v3" % (sW, EX))
    for k in (4, 0, 1, 2, 3):
        for r in range(16):
            p("v_accvgpr_read_b32 v%d, a%d\nv_accvgpr_read_b32 v%d, a%d" % (U+32*k+2*r, 16*k+r, U+32*k+2*r+1, 16*(k+5 if k < 4 else 4)+r))
    for r in range(16): p("v_permlane16_swap_b32 v%d, v%d" % (U+128+2*r, U+128+2*r+1))
    for t in range(1, 16):
        seqs = []
        for k in range(5):
            d = (E if t & 1 else T) + 2*k
            h = U+32*k if t == 1 else (T if t & 1 else E) + 2*k
            seqs.append(cfma(d, PR+4*k, h, U+32*k+2*t))
        for q in range(2):
            for s_ in seqs: p(s_[q])
    for k in range(5): p("ds_write_b64 v31, %s offset:%d" % (V(E+2*k, 2), 256*k))
    p("s_waitcnt lgkmcnt(0)\ns_barrier")
    ES = 14
    es = [T, T+2, T+4, T+6, T+8, T+10, E, E+2]
    p("s_cmp_eq_u32 s%d, 3\ns_cbranch_scc1 L_ssm_s1" % sW)
    p("v_add_u32 v32, 0x%x, v%d" % (EX, TS+6))
    for g in range(8): p("ds_read_b64 %s, v32 offset:%d" % (V(es[g], 2), 1280*g))
    cur = es[0]
    for g in range(1, 8):
        d = E+4 + 2*(g & 1); p(cfma(d, TS, cur, es[g])); cur = d
    p("v_min_u32 v%d, -2, v%d\nv_min_u32 v%d, -2, v%d" % (cur, cur, cur+1, cur+1))
    p("buffer_store_dwordx2 %s, v%d, %s, s47 offen sc1" % (V(cur, 2), TS+6, S(SC)))
    p("L_ssm_s1:")
    stamp(p, 3)
    for k in range(5):
        for t in range(0, 16, 4):
            sq = [cmul(U+32*k+2*(t+q), U+32*k+2*(t+q), PR+4*k+2, 14+2*q) for q in range(4)]
            for q in range(2): p([x[q] for x in sq])
    p("s_cmp_eq_u32 s%d, 3\ns_cbranch_scc1 L_ssm_s2" % sW)
    p("s_lshl_b32 s14, s%d, 6\nv_mov_b32 v1, s14\ns_mov_b32 s69, 0\nL_ssm_p0:\nglobal_load_dword v2, v1, s[42:43] sc1\ns_add_u32 s69, s69, 1\ns_lshr_b32 s68, s69, 14\ns_waitcnt vmcnt(0)\nv_readfirstlane_b32 s14, v2\ns_max_u32 s14, s14, s68\ns_cmp_lt_u32 s14, 16\ns_cbranch_scc1 L_ssm_p0" % sG)
    cr = [14, 16, 18, 20, 34, 36, 38, 10, 2, E+8, E+10] + [PR+4*k+2 for k in range(4)]
    p("s_sub_u32 s14, s47, %d\nL_ssm_p1:\nv_add_u32 v1, s14, v%d" % (15*2048, TS+6))
    for t in range(15):
        p("buffer_load_dwordx2 %s, v1, %s, 0 offen sc1\nv_add_u32 v1, 2048, v1" % (V(cr[t], 2), S(SC)))
    p("s_waitcnt vmcnt(0)\nv_max_u32 v1, v%d, v%d" % (cr[0], cr[0]+1))
    for t in range(1, 15): p("v_max3_u32 v1, v1, v%d, v%d" % (cr[t], cr[t]+1))
    p("v_cmp_eq_u32 vcc, -1, v1\ns_add_u32 s69, s69, 1\ns_cmp_lt_u32 s69, 0x40000\ns_cselect_b64 s[12:13], -1, 0\ns_and_b64 vcc, vcc, s[12:13]\ns_cbranch_scc1 L_ssm_p1")
    cur = cr[0]
    for t in range(1, 15):
        d = E+4 + 2*(t & 1); p(cfma(d, TS+2, cur, cr[t])); cur = d
    for g in range(8):
        p(cmul(14+2*(g & 1), cur, TS+4, 18)); p("ds_write_b64 v32, %s offset:%d" % (V(14+2*(g & 1), 2), 1280*g))
        if g < 7:
            d = E+4 + (2 if cur == E+4 else 0); p(cfma(d, TS, cur, es[g])); cur = d
    p("L_ssm_s2:\ns_waitcnt vmcnt(0) lgkmcnt(0)\ns_barrier")
    stamp(p, 4)
    for k in range(5): p("ds_read_b64 %s, v31 offset:%d" % (V(E+2*k, 2), 256*k))
    p("s_lshl_b32 s14, s%d, 12\ns_add_u32 s14, s14, 0x%x" % (sW, XA))
    p("v_and_b32 v1, 31, v0\nv_bfe_u32 v2, v0, 1, 2\nv_lshlrev_b32 v3, 1, v6\nv_xor_b32 v2, v2, v3\nv_lshlrev_b32 v1, 6, v1\nv_lshl_add_u32 v1, v2, 4, v1\nv_add_u32 v14, s14, v1\nv_xor_b32 v15, 16, v14")
    p("v_bfe_u32 v1, v0, 2, 2\nv_lshl_add_u32 v1, v6, 3, v1\nv_lshlrev_b32 v1, 6, v1\nv_and_b32 v2, 1, v0\nv_lshlrev_b32 v2, 1, v2\nv_bfe_u32 v3, v0, 4, 1\nv_add_u32 v2, v2, v3")
    p("v_bfe_u32 v3, v0, 3, 1\nv_xor_b32 v2, v2, v3\nv_lshl_add_u32 v1, v2, 4, v1\nv_bfe_u32 v3, v0, 1, 1\nv_lshl_add_u32 v1, v3, 3, v1\nv_add_u32 v16, s14, v1\nv_xor_b32 v17, 32, v16\nv_add_u32 v17, 256, v17")
    p("s_waitcnt lgkmcnt(0)\ns_barrier")
    HS = 0
    for grp in ((0, 1), (2, 3, 4)):
        for t in range(16):
            sq = [cfma(U+32*k+2*t, PR+4*k, E+2*k if t == 0 else U+32*k+2*t-2, U+32*k+2*t) for k in grp]
            for q in range(2): p([x[q] for x in sq])
        for k in grp:
            b = U+32*k; c = T if k & 1 else 32
            for q in range(8): p("v_cvt_pk_bf16_f32 v%d, -v%d, -v%d" % (c+q, b+4*q+1, b+4*q+3))
            for q in range(8): p("v_cvt_pk_bf16_f32 v%d, v%d, v%d" % (b+q, b+4*q, b+4*q+2))
            p("ds_write_b128 v14, %s offset:2048\nds_write_b128 v15, %s offset:2048\nds_write_b128 v14, %s\nds_write_b128 v15, %s" % (V(c), V(c+4), V(b), V(b+4)))
            for comp in range(2):
                for jl in range(2 if k < 4 else 1):
                    h = HS + comp*36 + 4*(2*k+jl)
                    p("ds_read_b64_tr_b16 %s, v16 offset:%d\nds_read_b64_tr_b16 %s, v17 offset:%d" % (A(h, 2), comp*2048+jl*1024, A(h+2, 2), comp*2048+jl*1024))
    ACC = [[96, 112], [128, 144]]; PK = 160
    mf = []
    for dp in range(9):
        for kk in range(18):
            for u in range(2):
                n = len(mf); c = V(ACC[dp & 1][u], 16)
                mf.append("v_mfma_f32_32x32x16_bf16 %s, %s, %s, %s" % (c, A(FB+4*(n % NFB)), A(HS+4*kk), c if kk else "0"))
    G = Gaps(mf)
    def rd2(n):
        dp, r = divmod(n, 36); kk, u = divmod(r, 2); comp, j = divmod(kk, 9)
        return ["ds_read_b128 %s, v%d offset:%d" % (A(FB+4*(n % NFB)), RC+(dp+9) % 4, comp*18432+u*9216+32*j)]
    avoid = {}; ep = {}
    assert not ring(G, 9, 9, 17)
    for dp in range(1, 9):
        g = 36*dp
        fr = epilogue_items(ACC[(dp-1) & 1], PK); ep[dp] = fr
        G.add(g+2, "pre", "s_mov_b32 s%d, 0x%x" % (sST, (dp-1)*65536))
        for f in range(4): G.add(g+8+6*f, "vm", fr[f][1], "ps"); avoid[g+8+6*f] = 0
    pro = place_reads(G, 324, rd2, L, avoid, 2, 4, gate)
    for dp in ep:
        for f in range(4): G.spread(ep[dp][f][0], 36*dp+(5 if f == 0 else 3+6*f), 36*dp+8+6*f)
    p("s_waitcnt lgkmcnt(0)")
    stamp(p, 5)
    p(pro); p(WaitL("f3"))
    G.emit(p)
    stamp(p, 6)
    fr = epilogue_items(ACC[0], PK)
    p("s_mov_b32 s%d, 0x%x" % (sST, 8*65536))
    for f in range(4): p(fr[f][0]); p(fr[f][1], "ps")
    stamp_flush(p, 8)
    p("s_endpgm")

def main_kernel():
    p = Prog(); entry(p)
    p("s_cmp_eq_u32 s%d, 3\ns_cbranch_scc1 L_ssm" % sQ)
    n0 = len(p.items)
    ffn(p); t1 = p.finish()
    if OPT.get("verbose"): print("ffn", p.stats, file=sys.stderr)
    q = Prog(); entry(q); q("s_cmp_eq_u32 s%d, 3\ns_cbranch_scc1 L_ssm" % sQ)
    ssm(q); t2 = q.finish()
    if OPT.get("verbose"): print("ssm", q.stats, file=sys.stderr)
    t2 = t2[t2.index("L_ssm:"):]
    return t1 + t2 + "L_code_end:\n"

def reduce_kernel():
    p = Prog()
    p("s_cmp_ge_u32 s2, 576\ns_cbranch_scc0 L_rgo\ns_endpgm\nL_rgo:")
    p("s_load_dwordx2 s[16:17], s[0:1], 0\ns_load_dwordx2 s[32:33], s[0:1], 64\ns_load_dwordx2 s[40:41], s[0:1], 96\ns_load_dwordx2 s[44:45], s[0:1], 112")
    p("v_lshrrev_b32 v1, 6, v0\nv_and_b32 v0, 63, v0\nv_readfirstlane_b32 s3, v1")
    p("s_mul_i32 s4, s2, 7282\ns_lshr_b32 s4, s4, 16\ns_mul_i32 s5, s4, 9\ns_sub_u32 s5, s2, s5")
    assert all((n*7282) >> 16 == n//9 for n in range(576))
    p("s_lshl_b32 s6, s2, 16\ns_lshl_b32 s7, s3, 10\ns_add_u32 s6, s6, s7\nv_lshlrev_b32 v8, 4, v0\nv_add_u32 v8, s6, v8")
    p("v_bfe_u32 v5, v0, 2, 1\nv_lshlrev_b32 v5, 4, v5\nv_bfe_u32 v6, v0, 3, 2\nv_lshl_add_u32 v5, v6, 2, v5\nv_and_b32 v6, 3, v0\nv_add_u32 v5, v5, v6")
    p("s_lshl_b32 s15, s4, 5\nv_add_u32 v5, s15, v5\nv_lshrrev_b32 v6, 5, v0")
    p("s_lshl_b32 s7, s5, 2\ns_add_u32 s7, s7, s3\ns_lshl_b32 s7, s7, 4\nv_lshl_add_u32 v7, v6, 2, s7")
    p("s_waitcnt lgkmcnt(0)")
    srd(p, SWS, 44, 0x10000000); srd(p, SX, 16, 2048*1152); srd(p, SA, 32, 1152); srd(p, SB, 40, 2048*2304)
    for s in range(16):
        p("s_mov_b32 s8, %d\nbuffer_load_dwordx4 %s, v8, %s, s8 offen" % (4096*s, V(32+4*s), S(SWS)))
    p("v_lshlrev_b32 v1, 3, v5\nv_add_u32 v1, 0x%x, v1\nbuffer_load_dwordx2 v[10:11], v1, %s, 0 offen" % (STATS, S(SWS)))
    p("v_mul_u32_u24 v1, 576, v5\nv_add_u32 v1, v1, v7\nv_lshlrev_b32 v2, 1, v1\nv_lshlrev_b32 v9, 2, v1\nv_lshlrev_b32 v3, 1, v7")
    p("buffer_load_dwordx2 v[12:13], v2, %s, 0 offen\nbuffer_load_dwordx2 v[14:15], v2, %s, 0 offen offset:16" % (S(SX), S(SX)))
    p("buffer_load_dwordx2 v[16:17], v3, %s, 0 offen\nbuffer_load_dwordx2 v[18:19], v3, %s, 0 offen offset:16" % (S(SA), S(SA)))
    p("s_mov_b32 s10, 0x3f80\ns_mov_b32 s11, 0x3f800000\ns_mov_b32 s15, 0xffff0000")
    for i in range(8): p("v_mov_b32 v%d, 0" % (20+i))
    for s in range(16):
        for q in range(4):
            p("v_dot2c_f32_bf16 v%d, s10, v%d\nv_dot2c_f32_bf16 v%d, s11, v%d" % (20+2*q, 32+4*s+q, 21+2*q, 32+4*s+q))
    p("v_rcp_f32 v11, v11\nv_mov_b32 v4, 0x%x" % f2u(-1/LOG2E))
    for q in range(4):
        x, d = 12+q, 16+q
        p("v_lshlrev_b32 v28, 16, v%d\nv_and_b32 v29, s15, v%d\nv_sub_f32 v30, v28, v10\nv_sub_f32 v31, v29, v10\nv_cvt_pk_bf16_f32 v30, v30, v31" % (x, x))
        p("v_and_b32 v31, s15, v30\nv_lshlrev_b32 v30, 16, v30\nv_mul_f32 v30, v30, v11\nv_mul_f32 v31, v31, v11\nv_cvt_pk_bf16_f32 v30, v30, v31")
        p("v_and_b32 v31, s15, v30\nv_lshlrev_b32 v30, 16, v30\nv_lshlrev_b32 v1, 16, v%d\nv_and_b32 v2, s15, v%d\nv_mul_f32 v30, v30, v1\nv_mul_f32 v31, v31, v2\nv_cvt_pk_bf16_f32 v30, v30, v31" % (d, d))
        p("v_and_b32 v31, s15, v30\nv_lshlrev_b32 v30, 16, v30\nv_add_f32 v28, v28, v30\nv_add_f32 v29, v29, v31")
        p("v_fma_f32 v%d, v%d, v4, v28\nv_fma_f32 v%d, v%d, v4, v29" % (20+2*q, 20+2*q, 21+2*q, 21+2*q))
    p("buffer_store_dwordx4 v[20:23], v9, %s, 0 offen\nbuffer_store_dwordx4 v[24:27], v9, %s, 0 offen offset:32" % (S(SB), S(SB)))
    p("s_endpgm")
    return p.finish()

def build():
    K1 = NAME + "_kernel"; K2 = "reduce_kernel"
    ex = "  .amdhsa_float_denorm_mode_32 3\n"
    s = "; @launch kernel=%s grid=(256,1,1) block=(256,1,1) lds=163840\n; @launch kernel=%s grid=(576,1,1) block=(256,1,1) lds=0\n" % (K1, K2)
    s += ".amdgcn_target \"amdgcn-amd-amdhsa--gfx950\"\n.text\n" + head(K1) + main_kernel() + head(K2) + reduce_kernel()
    s += ".section .rodata,\"a\"\n.p2align 6\n" + kd(K1, 512, 256, 102, ex) + ".p2align 6\n" + kd(K2, 96, 96, 102, ex)
    return s
if __name__ == "__main__":
    out = sys.argv[1]
    for a in sys.argv[2:]:
        k, v = a.split("="); OPT[k] = int(v) if v.lstrip("-").isdigit() else v
    open(out, "w").write(build())
```

```python
import sys, struct
from fw import *
from asmlib import NAME, kd, head
def f2u(x): return struct.unpack("<I", struct.pack("<f", x))[0]
LOG2E = 1.4426950408889634
CARRY = 0x2800000; FLAGS = 0x2900000; STAMP = 0x8000000
OPT = dict(stamp=0, pf=3, rot=1, outflav="")
sW, sM, sQ, sG, sS = 3, 4, 5, 6, 7
SX, SA, SB, SWS, SC = 48, 52, 56, 60, 64
sWB, sOFF, sST = 8, 9, 10
XN = 112
XA = 147456
FS = 1280
def DS(): return OPT.get('ds', 69632)
def srd(p, d, ptr, size):
    p("s_mov_b32 s%d, s%d\ns_mov_b32 s%d, s%d\ns_mov_b32 s%d, 0x%x\ns_mov_b32 s%d, 0x20000" % (d, ptr, d+1, ptr+1, d+2, size, d+3))
def S(d): return "s[%d:%d]" % (d, d+3)
def V(a, n=4): return "v[%d:%d]" % (a, a+n-1)
def A(a, n=4): return "a[%d:%d]" % (a, a+n-1)
def TM(): return "s_memtime" if OPT["stamp"] == 2 else "s_memrealtime"
def stx(i): return "%s s[%d:%d]" % (TM(), 70+2*i, 71+2*i)
def stamp(p, i, mode=0):
    if OPT["stamp"] and (OPT.get("smode", 0) == mode or i == 0): p(stx(i))
def gstamp(G, g, i, mode=0):
    if OPT["stamp"] and OPT.get("smode", 0) == mode: G.add(g, "pre", stx(i))
def stamp_flush(p, last):
    if not OPT["stamp"]: return
    p("s_waitcnt vmcnt(0)"); stamp(p, last); stamp(p, 11, 1); p("s_waitcnt lgkmcnt(0)")
    p("s_lshl_b32 s11, s2, 2\ns_add_u32 s11, s11, s%d\ns_lshl_b32 s11, s11, 7\ns_add_u32 s11, s11, 0x%x\nv_mov_b32 v1, 0" % (sW, STAMP))
    for i in range(12):
        p("v_mov_b32 v2, s%d\nv_mov_b32 v3, s%d\nbuffer_store_dwordx2 v[2:3], v1, %s, s11 offen offset:%d" % (70+2*i, 71+2*i, S(SWS), 8*i))
    p("v_mov_b32 v2, s69\nv_mov_b32 v3, 0\nbuffer_store_dwordx2 v[2:3], v1, %s, s11 offen offset:96" % S(SWS))
def touch(text):
    x = I(text, "pf"); x.W = set(); return x
def untracked(text):
    x = I("s_nop 0"); x.text = text; x.k = "sctl"; return x

def entry(p):
    p("s_cmp_ge_u32 s2, 256\ns_cbranch_scc0 L_go\ns_endpgm\nL_go:")
    stamp(p, 0)
    p("s_load_dwordx16 s[16:31], s[0:1], 0\ns_load_dwordx8 s[32:39], s[0:1], 64\ns_load_dwordx4 s[40:43], s[0:1], 96\ns_load_dwordx2 s[44:45], s[0:1], 112")
    p("s_getpc_b64 s[12:13]\nL_pc:")
    p("v_lshrrev_b32 v1, 6, v0\nv_and_b32 v0, 63, v0\nv_readfirstlane_b32 s%d, v1" % sW)
    p("s_lshr_b32 s11, s2, 3\ns_and_b32 s%d, s11, 3\ns_bfe_u32 s%d, s2, 0x20001" % (sQ, sG))
    p("s_and_b32 s14, s2, 1\ns_lshl_b32 s14, s14, 3\ns_lshr_b32 s%d, s11, 2\ns_add_u32 s%d, s%d, s14" % (sM, sM, sM))
    p("s_lshl_b32 s14, s11, 2\ns_add_u32 s14, s14, s%d\ns_mul_i32 s14, s14, 5" % sW)
    p("v_min_u32 v1, 4, v0\nv_add_u32 v1, s14, v1\nv_lshlrev_b32 v1, 7, v1\nv_min_u32 v1, L_code_end-L_pc-4, v1")
    p("v_mov_b32 v3, s13\nv_add_co_u32 v2, vcc, s12, v1\nv_addc_co_u32 v3, vcc, 0, v3, vcc")
    p(touch("global_load_dword v4, v[2:3], off"))
    p("s_lshl_b32 s46, s%d, 2\ns_add_u32 s46, s46, s%d\ns_lshl_b32 s15, s46, 5\nv_lshrrev_b32 v6, 5, v0" % (sM, sW))
    p("v_bfe_u32 v1, v0, 3, 2\nv_lshl_add_u32 v1, v6, 4, v1\nv_add_u32 v1, s15, v1\nv_mul_u32_u24 v1, 1152, v1")
    p("v_and_b32 v2, 7, v0\nv_lshrrev_b32 v3, 4, v0\nv_xor_b32 v2, v2, v3\nv_lshl_add_u32 v40, v2, 4, v1\nv_xor_b32 v2, 4, v2\nv_lshl_add_u32 v41, v2, 4, v1")
    p("v_add_u32 v42, %d, v40\nv_add_u32 v43, %d, v41\nv_add_u32 v41, %d, v41" % (2*3584, 3*3584, 3584))
    p("s_mul_i32 s47, s%d, 36864" % sW)
    p("v_bfe_u32 v5, v0, 2, 1\nv_lshlrev_b32 v5, 4, v5\nv_bfe_u32 v1, v0, 3, 2\nv_lshl_add_u32 v5, v1, 2, v5\nv_and_b32 v1, 3, v0\nv_add3_u32 v5, v5, v1, s15")
    p("v_and_b32 v1, 31, v0\nv_bfe_u32 v2, v0, 1, 3\nv_xor_b32 v2, v2, v6\nv_lshlrev_b32 v3, 7, v1")
    for jj in range(4): p("v_xor_b32 v7, %d, v2\nv_lshl_add_u32 v%d, v7, 4, v3\nv_add_u32 v%d, s47, v%d" % (2*jj, 32+jj, 36+jj, 32+jj))
    p("s_mul_i32 s15, s46, %d\nv_lshlrev_b32 v8, 4, v0\nv_add_u32 v8, s15, v8" % (9*DS()))
    p("s_mul_i32 s%d, s%d, 3\ns_add_u32 s%d, s%d, s%d\ns_add_u32 s14, s%d, 12\ns_cmp_eq_u32 s%d, 3\ns_cselect_b32 s%d, s14, s%d" % (sS, sG, sS, sS, sQ, sG, sQ, sS, sS))
    p("s_lshl_b32 s14, s46, 4\ns_add_u32 s14, s14, s%d\ns_mul_i32 s14, s14, %d\ns_add_u32 s14, s14, 0x%x" % (sS, FS, FLAGS))
    p("v_min_u32 v7, 1, v0\nv_lshlrev_b32 v7, 30, v7\nv_add_u32 v7, s14, v7\ns_mov_b32 s69, 0\nv_lshl_add_u32 v44, v0, 4, s14\nv_mov_b32 v13, 0")
    p("v_mov_b32 v9, 0\nv_mov_b32 v10, 0\nv_mov_b32 v11, 0\nv_mov_b32 v12, 0")
    p("s_waitcnt lgkmcnt(0)")
    srd(p, SX, 16, 2048*1152)
    p("s_cmp_eq_u32 s%d, 3\ns_cbranch_scc1 L_ssm" % sQ)

def xissue(p, c, so):
    p("s_add_u32 m0, s47, %d" % (4096*c)); p(so)
    for i in range(4):
        p("buffer_load_dwordx4 v%d, %s, s%d offen offset:%d lds" % (40+i, S(SX), sOFF, 1024*i), tag="x%d" % c)

def stats(p, xso, after_bar, scale, AH, extra={}):
    p("s_mov_b32 s14, 0x3f803f80")
    def dots(c):
        for x in range(XN+16*c, XN+16*c+16):
            p("v_dot2c_f32_bf16 v%d, s14, v%d\nv_dot2c_f32_bf16 v%d, v%d, v%d" % (9+(x & 1), x, 11+(x & 1), x, x))
    for c in range(9):
        p(WaitV("x%d" % c))
        for jj in range(4): p("ds_read_b128 %s, v%d offset:%d" % (V(XN+16*c+4*jj), 36+jj, 4096*c), tag="xr%d" % c)
        if c+AH < 9: xissue(p, c+AH, xso(c+AH))
        p(extra.get(c, []))
        p(WaitL("xr%d" % c))
        if c < 8: dots(c)
    p("s_barrier")
    stamp(p, 1)
    p(after_bar)
    dots(8)
    p("v_add_f32 v9, v9, v10\nv_add_f32 v11, v11, v12\nv_mov_b32 v10, v9\nv_mov_b32 v12, v11")
    p("v_permlane32_swap_b32 v9, v10\nv_permlane32_swap_b32 v11, v12\nv_add_f32 v9, v9, v10\nv_add_f32 v11, v11, v12")
    p("v_mul_f32 v9, 0x%x, v9\nv_mul_f32 v11, 0x%x, v11" % (f2u(1/576.), f2u(1/576.)))
    p("v_fma_f32 v12, -v9, v9, v11\nv_max_f32 v12, 0, v12\nv_cvt_pk_bf16_f32 v10, v9, v12")
    p("v_lshlrev_b32 v9, 16, v10\nv_and_b32 v12, 0xffff0000, v10\nv_add_f32 v12, 0x%x, v12" % f2u(1e-5))
    p("v_cvt_pk_bf16_f32 v12, v12, v12\nv_and_b32 v12, 0xffff0000, v12\nv_sqrt_f32 v12, v12")
    p("v_cvt_pk_bf16_f32 v12, v12, v12\nv_and_b32 v12, 0xffff0000, v12\nv_rcp_f32 v12, v12")
    p("v_mul_f32 v10, 0x%x, v12" % f2u(scale))
    p("v_mul_f32 v11, v10, v9\nv_xor_b32 v11, 0x80000000, v11\ns_mov_b32 s15, 0xffff0000")
def center(j, t, pk=False):
    o = []
    for h in range(2):
        a, b = XN+4*j+2*h, XN+4*j+2*h+1
        o += ["v_lshlrev_b32 v%d, 16, v%d" % (t, a), "v_and_b32 v%d, s15, v%d" % (t+1, a), "v_lshlrev_b32 v%d, 16, v%d" % (t+2, b), "v_and_b32 v%d, s15, v%d" % (t+3, b)]
        if pk: o += ["v_pk_fma_f32 %s, %s, v[10:11], v[10:11] op_sel:[0,0,1] op_sel_hi:[1,0,1]" % (V(t+k, 2), V(t+k, 2)) for k in (0, 2)]
        else: o += ["v_fma_f32 v%d, v%d, v10, v11" % (t+k, t+k) for k in range(4)]
        o += ["v_cvt_pk_bf16_f32 v%d, v%d, v%d" % (a, t, t+1), "v_cvt_pk_bf16_f32 v%d, v%d, v%d" % (b, t+2, t+3)]
    return o
def announce(p, name, offs):
    p("s_cmp_lg_u32 s%d, 0\ns_cbranch_scc1 %s\ns_mov_b64 exec, 1\nv_mov_b32 v2, 1" % (sW, name))
    for o in offs:
        p("v_mov_b32 v1, s%d" % o); p(untracked("global_atomic_add v1, v2, s[42:43]"))
    p("s_mov_b64 exec, -1\n%s:" % name)

def cvts(acc, h, pk): return ["v_cvt_pk_bf16_f32 v%d, v%d, v%d" % (pk+q, acc+8*h+2*q, acc+8*h+2*q+1) for q in range(4)]
def pstore(pk, vo, off): return "buffer_store_dwordx4 %s, v%d, %s, s%d offen offset:%d sc1" % (V(pk), vo, S(SWS), sST, off)
def pload(dst, vo, so, off): return "buffer_load_dwordx4 %s, v%d, %s, s%d offen offset:%d sc1" % (V(dst), vo, S(SWS), so, off)
def psum(rs, src, t, first=False, dot=False):
    o = []
    if dot:
        for q in range(4): o += ["v_dot2c_f32_bf16 v%d, s12, v%d" % (rs+2*q, src+q), "v_dot2c_f32_bf16 v%d, s13, v%d" % (rs+2*q+1, src+q)]
        return o
    if first:
        for q in range(4): o += ["v_lshlrev_b32 v%d, 16, v%d" % (rs+2*q, src+q), "v_and_b32 v%d, s15, v%d" % (rs+2*q+1, src+q)]
        return o
    for q in range(0, 4, 2):
        o += ["v_lshlrev_b32 v%d, 16, v%d" % (t, src+q), "v_lshlrev_b32 v%d, 16, v%d" % (t+1, src+q+1),
              "v_and_b32 v%d, s15, v%d" % (src+q, src+q), "v_and_b32 v%d, s15, v%d" % (src+q+1, src+q+1),
              "v_add_f32 v%d, v%d, v%d" % (rs+2*q, rs+2*q, t), "v_add_f32 v%d, v%d, v%d" % (rs+2*q+2, rs+2*q+2, t+1),
              "v_add_f32 v%d, v%d, v%d" % (rs+2*q+1, rs+2*q+1, src+q), "v_add_f32 v%d, v%d, v%d" % (rs+2*q+3, rs+2*q+3, src+q+1)]
    return o
def baseterm(b, x, dl, mr, t):
    return ["v_lshlrev_b32 v%d, 16, v%d" % (b, x), "v_and_b32 v%d, s15, v%d" % (b+1, x), "v_sub_f32 v%d, v%d, v%d" % (t, b, mr), "v_sub_f32 v%d, v%d, v%d" % (t+1, b+1, mr),
            "v_cvt_pk_bf16_f32 v%d, v%d, v%d" % (t, t, t+1), "v_and_b32 v%d, s15, v%d" % (t+1, t), "v_lshlrev_b32 v%d, 16, v%d" % (t, t),
            "v_mul_f32 v%d, v%d, v%d" % (t+1, t+1, mr+1), "v_mul_f32 v%d, v%d, v%d" % (t, t, mr+1),
            "v_cvt_pk_bf16_f32 v%d, v%d, v%d" % (t, t, t+1), "v_and_b32 v%d, s15, v%d" % (t+1, t), "v_lshlrev_b32 v%d, 16, v%d" % (t, t),
            "v_mul_f32 v%d, v%d, v%d" % (t+1, t+1, dl+1), "v_mul_f32 v%d, v%d, v%d" % (t, t, dl),
            "v_cvt_pk_bf16_f32 v%d, v%d, v%d" % (t, t, t+1), "v_and_b32 v%d, s15, v%d" % (t+1, t), "v_lshlrev_b32 v%d, 16, v%d" % (t, t),
            "v_add_f32 v%d, v%d, v%d" % (b+1, b+1, t+1), "v_add_f32 v%d, v%d, v%d" % (b, b, t)]
def unpack(d, x): return ["v_lshlrev_b32 v%d, 16, v%d" % (d, x), "v_and_b32 v%d, s15, v%d" % (d+1, x)]
class Poll:
    def __init__(self, name, load, cmp, mask):
        self.name, self.ld, self.cmp, self.mask = name, load, cmp, mask
    def load(self):
        if self.mask == "exec": return [I(self.ld, self.name)]
        return [I("s_mov_b64 exec, %s" % self.mask), I(self.ld, self.name), I("s_mov_b64 exec, -1")]
    def chk(self): return ["s_and_b64 vcc, vcc, %s" % self.mask, "s_cbranch_scc1 %s_spin" % self.name, "%s_ret:" % self.name]
    def place(self, G, g_load, g_chk):
        G.add(g_load, "vm", self.load())
        G.add(g_chk, "pre", WaitV(self.name)); G.add(g_chk, "va", self.cmp); G.add(g_chk+1, "pre", self.chk())
    def check(self, p): p(WaitV(self.name)); p(self.cmp); p(self.chk())
    def spin(self):
        return (["%s_spin:" % self.name] + self.load() + ["s_add_u32 s69, s69, 1\ns_cmp_lt_u32 s69, 0x40000\ns_cselect_b64 s[100:101], %s, 0\ns_waitcnt vmcnt(0)\n%s\ns_and_b64 vcc, vcc, s[100:101]\n"
                "s_cbranch_scc1 %s_spin\ns_branch %s_ret" % (self.mask, self.cmp, self.name, self.name)])

def place_reads(G, nfr, rd, L, avoid, maxper, wgrp, nfb, gate=None):
    items = [(n, I(x, "f%d" % n)) for n in range(nfr) for x in rd(n)]
    pos = [None]*len(items); used = {}
    g = 10**9
    for k in range(len(items)-1, -1, -1):
        g = min(g, items[k][0] - L)
        while g >= 0 and used.get(g, 0) >= avoid.get(g, maxper): g -= 1
        pos[k] = max(g, -1); used[g] = used.get(g, 0) + 1
    if gate:
        used = {}; g = -1
        for k, (n, x) in enumerate(items):
            g = max(g, pos[k], gate(n) if gate(n) > 0 else -1)
            while g >= 0 and used.get(g, 0) >= avoid.get(g, maxper): g += 1
            pos[k] = g; used[g] = used.get(g, 0) + 1
    pro = []; first = {}; last = {}
    for k, (n, x) in enumerate(items):
        assert n - nfb < max(pos[k], -1) + 1 or pos[k] < 0 and n < nfb, (n, pos[k])
        assert pos[k] <= n - wgrp - 1 or pos[k] < 0, (n, pos[k])
        first.setdefault(n, pos[k]); last[n] = pos[k]
        if pos[k] < 0: pro.append(x)
        else: G.add(pos[k], "ds", x)
    for g in range(wgrp-1, nfr-1, wgrp):
        G.g[g]["pre"].append(WaitL("f%d" % min(g+wgrp, nfr-1)))
    return pro, first, last
def report(nm, G, step):
    if OPT.get("verbose"):
        ld = [G.load(g) for g in range(len(G.mf))]
        print(nm, " ".join("%.1f/%.0f" % (sum(ld[b:b+step])/step, max(ld[b:b+step])) for b in range(0, len(ld), step)), file=sys.stderr)

def ffn(p):
    DV, RB, DV2, T = 13, 19, 25, 32
    ACC = [[40, 56], [72, 88]]
    HV = 104; FB = 128; NFB = 18; HA = 0
    sP = 15
    sK = 24
    MK = [28, 30, 94, 96, 98]
    AH = 3
    rot = OPT["rot"]
    p("s_mul_i32 s68, s%d, %d" % (sQ, 384*rot))
    def xso(c):
        if c == 0: return ["s_mov_b32 s%d, s68" % sOFF]
        o = ["s_add_u32 s%d, s%d, 128" % (sOFF, sOFF)]
        if c % 3 == 0: o += ["s_cmp_eq_u32 s%d, 1152" % sOFF, "s_cselect_b32 s%d, 0, s%d" % (sOFF, sOFF)]
        return o
    for c in range(AH): xissue(p, c, xso(c))
    srd(p, SWS, 44, 0x10000000)
    p("buffer_store_dwordx4 v[10:13], v44, %s, 0 offen sc1" % S(SWS), tag="clr")
    srd(p, SA, 36, 576*9216); srd(p, SB, 38, 4608*1152); srd(p, SC, 40, 2048*2304)
    for c in range(3):
        p("s_add_u32 s14, s%d, %d\ns_cmp_ge_u32 s14, 3\ns_cselect_b32 s13, 3, 0\ns_sub_u32 s14, s14, s13\ns_mul_i32 s%d, s14, %d" % (sQ, c, sK+c, 192*9216) if rot else "s_mov_b32 s%d, %d" % (sK+c, c*192*9216))
    p("s_lshr_b32 s%d, s%d, 1" % (sP+8, sS))
    for sl in range(3, 8):
        p("s_add_u32 s14, s%d, %d\ns_cmp_ge_u32 s14, 6\ns_cselect_b32 s13, 6, 0\ns_sub_u32 s%d, s14, s13" % (sP+8, sl-2, sP+sl))
    p("v_lshrrev_b32 v1, 3, v0\nv_and_b32 v2, 7, v0\nv_lshlrev_b32 v3, 1, v1\nv_and_b32 v3, 4, v3\nv_xor_b32 v2, v2, v3\nv_lshlrev_b32 v2, 4, v2")
    p("s_mul_i32 s14, s%d, 48\nv_add_u32 v1, s14, v1\nv_mul_u32_u24 v3, 9216, v1\ns_mul_i32 s14, s%d, 768\nv_add3_u32 v%d, v3, v2, s14" % (sW, sS, DV))
    p("v_mul_u32_u24 v3, 1152, v1\ns_mul_i32 s14, s%d, %d\nv_add3_u32 v%d, v3, v2, s14" % (sS, 384*1152, DV2))
    for i in range(1, 6):
        p("v_add_u32 v%d, %d, v%d\nv_add_u32 v%d, %d, v%d" % (DV+i, i*8*9216 - (i % 3)*1024, DV, DV2+i, i*8*1152 - (i % 3)*1024, DV2))
    p("s_mul_i32 s%d, s%d, 6144" % (sWB, sW))
    p("s_and_b32 s13, s46, 31\ns_mul_i32 s13, s13, 108\ns_mul_i32 s14, s%d, 3456\ns_add_u32 s13, s13, s14\nv_min_u32 v1, 17, v0\nv_add_u32 v1, s13, v1\nv_lshlrev_b32 v31, 7, v1" % sS)
    p("s_and_b32 s13, s46, 31\ns_mul_i32 s13, s13, 18\nv_min_u32 v1, 17, v0\nv_add_u32 v1, s13, v1\nv_mul_u32_u24 v1, 9216, v1\ns_mul_i32 s14, s%d, 768\nv_add_u32 v3, s14, v1" % sS)
    t1 = lambda pr: [touch("buffer_load_dword v4, v3, %s, 0 offen offset:%d" % (S(SA), 128*pr))] if OPT["pf"] & 2 else []
    def dma(st, i):
        pre = []
        if st < 18:
            dv, sr = DV, SA
            if i == 0: pre.append("s_add_u32 s%d, s%d, %d" % (sOFF, sK + st % 3, (st//3)*128))
        else:
            dv, sr = DV2, SB; sl, c = divmod(st-18, 2)
            if i == 0:
                if c: pre.append("s_add_u32 s%d, s%d, %d" % (sOFF, sOFF, 192*1152))
                elif sl < 3: pre.append("s_movk_i32 s%d, %d" % (sOFF, (6+sl)*128))
                else: pre.append("s_lshl_b32 s%d, s%d, 7" % (sOFF, sP+sl))
        if i % 3 == 0: pre.append("s_add_u32 m0, s%d, 0x%x" % (sWB, (st % 6)*24576 + i*1024))
        return pre, I("buffer_load_dwordx4 v%d, %s, s%d offen offset:%d lds" % (dv+i, S(sr), sOFF, (i % 3)*1024), "st%d" % st)
    def dmas(st, i0, i1):
        o = []
        for i in range(i0, i1):
            a, b = dma(st, i); o += a + [b]
        return o
    p("v_and_b32 v1, 15, v0\nv_lshrrev_b32 v1, 2, v1\nv_lshl_add_u32 v1, v6, 3, v1\nv_lshlrev_b32 v1, 7, v1")
    p("v_and_b32 v2, 3, v0\nv_lshl_add_u32 v1, v2, 3, v1\nv_bfe_u32 v2, v0, 4, 1\nv_lshl_add_u32 v1, v2, 5, v1\nv_bfe_u32 v2, v0, 3, 1\nv_lshl_add_u32 v%d, v2, 6, v1" % RB)
    p("v_xor_b32 v%d, 64, v%d" % (RB+1, RB))
    for k in range(2, 6): p("v_add_u32 v%d, 0x%x, v%d" % (RB+k, (k//2)*49152, RB+(k & 1)))
    p("s_and_b32 s27, s%d, 1\ns_lshl_b32 s68, s%d, 3" % (sS, sM))
    stats(p, xso, dmas(0, 0, 6), -LOG2E, AH, {OPT.get('t0', 2): t1(0), OPT.get('t1', 6): t1(1)})
    announce(p, "L_ffn_an", [68])
    RB2 = 112; V8 = 118; PK = 120; HL = 136; RS = 152; BASE = 168; LB = 184
    vPA, vFL, vFV, vL, vTW, vTR, vO = 232, 233, 13, 14, 234, 235, 236
    SB2 = 240
    XD = LB
    def hreg(U):
        if U == 0: return "v", HV
        if U >= 10: return "v", HL + 8*(U-10)
        return "a", HA + 8*(U-1)
    mf = []; fr = []
    for pr in range(6):
        for j in range(36):
            for u in range(2):
                n = len(mf); c = V(ACC[pr & 1][u], 16)
                mf.append("v_mfma_f32_32x32x16_bf16 %s, %s, %s, %s" % (c, A(FB+4*(n % NFB)), V(XN+4*j), c if j else "0"))
                fr.append((3*pr + j//12, j % 12, u))
    for dp in range(9):
        order = [(kk, u) for kk in range(24) for u in range(2)] if dp < 8 else [(kk, u) for u in range(2) for kk in range(24)]
        for kk, u in order:
            k, b = hreg(kk//2); hb = "%s[%d:%d]" % (k, b+4*(kk & 1), b+4*(kk & 1)+3)
            n = len(mf); c = V(ACC[dp & 1][u], 16)
            mf.append("v_mfma_f32_32x32x16_bf16 %s, %s, %s, %s" % (c, A(FB+4*(n % NFB)), hb, c if kk else "0"))
            fr.append((18 + 2*dp + kk//12, kk % 12, u))
    G = Gaps(mf); N = len(mf)
    def rd(n):
        st, jj, u = fr[n]; sl = st % 6; fb = FB+4*(n % NFB)
        base = (RB if st < 18 else RB2) + 2*(sl//2) + u
        off = (sl & 1)*24576 + jj*2048; dq = 512 if st < 18 else 1024
        return ["ds_read_b64_tr_b16 %s, v%d offset:%d" % (A(fb, 2), base, off), "ds_read_b64_tr_b16 %s, v%d offset:%d" % (A(fb+2, 2), base, off+dq)]
    avoid = {}
    for st in range(36):
        g = 24*st
        if st+1 < 36:
            G.add(g, "pre", WaitV("st%d" % (st+1))); G.add(g, "pre", "s_barrier")
        if st+5 < 36:
            for i in range(6):
                gg = g + 1 + 4*i
                a, b = dma(st+5, i)
                G.add(gg, "pre", a); G.add(gg, "vm", b); avoid[gg] = 1 if gg < 480 else 2
    for pr in range(2, 6):
        g = 2 + 48*(pr-2); G.add(g, "vm", t1(pr)); avoid[g] = 1
    if OPT["pf"] & 1:
        for t in range(6):
            g = OPT.get("pf0", 122) + OPT.get("pfd", 36)*t
            G.add(g, "pre", "s_movk_i32 s11, %d" % (t*18*128)); G.add(g, "vm", touch("buffer_load_dword v4, v31, %s, s11 offen" % S(SB))); avoid[g] = 1
    g2 = lambda sl: 432 + 48*sl
    flag = lambda n: [I("buffer_store_dword v7, v7, %s, 0 offen offset:%d sc1" % (S(SWS), 128*(n & 7)), "fl%d" % n)]
    def setst(sl): return "s_mov_b32 s%d, 0x%x" % (sST, (6+sl)*DS()) if sl < 3 else "s_mul_i32 s%d, s%d, %d" % (sST, sP+sl, DS())
    late = []
    for sl in range(8):
        g0 = g2(sl+1)
        G.add(g0+2, "pre", setst(sl))
        for f in range(4):
            gg = g0 + 6 + 4*f
            G.add(gg, "vm", pstore(PK+4*f, V8 + f//2, 1024*(f & 1)), "ps%d" % sl); avoid[gg] = 0
            late.append((cvts(ACC[sl & 1][f//2], f & 1, PK+4*f), gg-3, gg))
        if sl >= 2:
            gf = g0 + OPT.get("gf", 38)
            G.add(gf, "pre", WaitV("ps%d" % sl)); G.add(gf, "vm", flag(sl+1)); avoid[gf] = 1
    g8 = g2(8)
    G.add(g8+24, "pre", setst(8))
    for h in range(2):
        gg = g8 + 28 + 2*h
        G.add(gg, "vm", pstore(PK+4*h, V8, 1024*h), "ps8"); avoid[gg] = 0
        late.append((cvts(ACC[0][0], h, PK+4*h), gg-1, gg))
    pc = Poll("L_fc", "global_load_dword v%d, v%d, s[42:43] sc1" % (vFL, vFV), "v_cmp_gt_u32 vcc, 16, v%d" % vFL, "exec")
    G.add(g2(1)+20, "va", "v_mov_b32 v%d, s68" % vFV)
    pc.place(G, g2(1)+23, g2(2)+22); avoid[g2(1)+23] = 1
    polls = [Poll("L_fp%d" % b, "buffer_load_dword v%d, v%d, %s, 0 offen sc1" % (vFL, vPA, S(SWS)), "v_cmp_eq_u32 vcc, 0, v%d" % vFL, "s[%d:%d]" % (MK[b], MK[b]+1)) for b in range(5)]
    def srcloads(dl, dst):
        return ["s_lshl_b32 s11, s%d, 13" % (sP+7-dl)], [pload(dst+8*a+4*h, vL+a, 11, 1024*h) for a in range(2) for h in range(2)]
    PG = OPT.get("pg", 12); sums = []; SB_ = 2
    def free(g, n):
        o = []
        while len(o) < n:
            if g not in avoid: o.append(g)
            g += 1
        return o
    bufs = [LB, LB+16, LB, 16]
    NB = 4 if g2(8)+PG+28 < N else 3
    for b in range(NB):
        g0 = free(g2(5+b)+PG, 1)[0]
        polls[b].place(G, g0, g0+20); avoid[g0] = 1
        dst = bufs[b]
        pre, lds = srcloads(b, dst)
        gl = free(g0+22, 12 if b == SB_ else 4)
        G.add(gl[0], "pre", pre)
        for g_, x in zip(gl, lds): G.add(g_, "vm", x, "ld%d" % b); avoid[g_] = 2
        items = sum((psum(RS+8*h, dst+8*a+4*h, T, first=(b == 0 and a == 0)) for a in range(2) for h in range(2)), [])
        if b < 2: sums.append(("ld%d" % b, items, g0+46, g0+46+40))
        if b == SB_:
            for a2 in range(2):
                G.add(gl[4+4*a2], "pre", "s_mov_b32 s11, %d" % ((12+2*a2)*4096))
                for a in range(2):
                    for h in range(2):
                        g_ = gl[4+4*a2+2*a+h]; d_ = (LB+32 if a2 == 0 else SB2)+8*a+4*h
                        G.add(g_, "vm", pload(d_, vL+a, 11, 1024*h), "lds%d" % a2); avoid[g_] = 2
            if g0+46+24 <= N:
                sums.append(("ld2", items, g0+46, min(N, g0+46+38))); tail_bufs = [LB+32, SB2]
            else: tail_bufs = [LB, LB+32, SB2]
    if NB == 4: tail_bufs.append(16)
    else: G.add(N-8, "vm", polls[3].load())
    for tg, it, a, b in sums: G.add(a, "pre", WaitV(tg))
    gb = free(g2(1)+26, 5)
    for q in range(4):
        G.add(gb[q], "pre", "s_movk_i32 s11, %d" % (q*8*1152))
        G.add(gb[q], "vm", "buffer_load_dwordx2 %s, v%d, %s, s11 offen" % (V(XD+2*q, 2), vO+1, S(SX)), "xb"); avoid[gb[q]] = 2
    G.add(gb[4], "vm", "global_load_dwordx2 %s, v%d, s[32:33]" % (V(XD+8, 2), vO+2), "xb"); avoid[gb[4]] = 2
    G.add(g2(1)+22, "ds", "ds_write_b64 v%d, v[10:11]" % vTW); avoid[g2(1)+22] = 0
    for q in range(4): G.add(g2(1)+40+q, "ds", "ds_read_b64 %s, v%d offset:%d" % (V(XD+16+2*q, 2), vTR, 64*q))
    G.add(g2(2)+26, "pre", WaitV("xb"))
    pro, first, last = place_reads(G, N, rd, 7, avoid, 3, 4, NFB)
    for n in range(N): assert fr[n][0] == 0 or first[n] >= 24*(fr[n][0]-1), n
    for it, a, b in late: G.spread(it, a, b)
    K0 = 24
    G.spread(sum((center(j, T + 4*(j & 1)) for j in range(K0, 36)), []), 0, 68)
    G.add(362, "pre", ["s_xor_b32 s13, s27, 1", "s_lshl_b32 s12, s13, 6"])
    G.add(366, "pre", ["s_lshl_b32 s13, s13, 11", "s_lshl_b32 s14, s%d, 12" % sS, "s_add_u32 s14, s14, s13"])
    G.spread(["v_lshlrev_b32 v1, 9, v6"] + sum((["v_sub_u32 v%d, v%d, v1" % (RB2+k, RB+k), "v_xor_b32 v%d, s12, v%d" % (RB2+k, RB2+k)] for k in range(6)), [])
             + ["v_add_u32 v%d, s14, v8" % V8, "v_xor_b32 v%d, 0x800, v%d" % (V8+1, V8)], 368, 410)
    def silu(pr):
        o = []
        for u in range(2):
            k, b = hreg(2*pr+u); ac = ACC[pr & 1][u]
            for g4 in range(4):
                t = T + 4*(g4 & 1); z = ac+4*g4
                ex = ["v_exp_f32 v%d, v%d" % (t+q, z+q) for q in range(4)]
                ad = ["v_add_f32 v%d, 1.0, v%d" % (t+q, t+q) for q in range(4)]
                rc = ["v_rcp_f32 v%d, v%d" % (t+q, t+q) for q in range(4)]
                mu = ["v_mul_f32 v%d, v%d, v%d" % (t+q, z+q, t+q) for q in range(4)]
                if k == "v": cv = [["v_cvt_pk_bf16_f32 v%d, v%d, v%d" % (b+2*g4+q, t+2*q, t+2*q+1)] for q in range(2)]
                else: cv = [["v_cvt_pk_bf16_f32 v%d, v%d, v%d" % (t+2*q, t+2*q, t+2*q+1), "v_accvgpr_write_b32 a%d, v%d" % (b+2*g4+q, t+2*q)] for q in range(2)]
                o.append((ex, ad, rc, mu, cv))
        r = []
        for i in range(len(o)+1):
            cur = o[i] if i < len(o) else None; prv = o[i-1] if i else None
            tail = []
            if prv: tail = prv[3][:2] + prv[4][0][:1] + prv[3][2:] + prv[4][0][1:] + prv[4][1]
            if cur:
                ex, ad, rc = cur[0], cur[1], cur[2]
                seq = [ex[0], None, ex[1], ad[0], None, ex[2], ad[1], None, ex[3], ad[2], None, rc[0], ad[3], None, rc[1], None, rc[2], None, rc[3], None]
            else: seq = []
            for x in seq:
                if x is None:
                    if tail: r.append(tail.pop(0))
                else: r.append(x)
            r += tail
        return r
    for pr in range(5): G.spread(silu(pr), 72*(pr+1)+3, 72*(pr+2)-1)
    G.spread(silu(5), 432+3, 432+38)
    G.add(g2(0)+38, "pre", ["s_lshl_b32 s12, s%d, 8" % sW, "s_add_u32 s12, s12, 0x%x" % XA])
    G.add(g2(0)+39, "pre", ["s_lshl_b32 s13, s46, 5", "s_lshl_b32 s14, s%d, 6" % sS])
    G.spread(["v_mov_b32 v10, v9", "v_mov_b32 v11, v12", "v_and_b32 v1, 31, v5", "v_lshl_add_u32 v%d, v1, 3, s12" % vTW, "v_lshrrev_b32 v1, 3, v0", "v_lshl_add_u32 v%d, v1, 3, s12" % vTR,
              "v_and_b32 v2, 7, v0", "v_lshl_add_u32 v%d, v2, 3, s14" % (vO+2), "v_add_u32 v1, s13, v1", "v_mul_u32_u24 v1, 1152, v1", "v_add_u32 v%d, v1, v%d" % (vO+1, vO+2),
              "v_lshlrev_b32 v%d, 1, v%d" % (vO, vO+1)], g2(0)+40, g2(1)+20)
    G.add(g2(2)+0, "pre", ["s_mul_i32 s12, s%d, %d" % (sP+8, DS()), "s_lshl_b32 s13, s27, 11"])
    G.add(g2(2)+2, "pre", ["s_add_u32 s12, s12, s13", "s_mul_i32 s13, s46, %d" % (16*FS)])
    G.add(g2(2)+4, "pre", ["s_add_u32 s13, s13, 0x%x" % FLAGS, "s_add_u32 s14, s%d, 5" % (sP+8)])
    G.spread(["v_add_u32 v%d, s12, v8" % vL, "v_add_u32 v%d, 0x1000, v%d" % (vL+1, vL),
              "v_lshrrev_b32 v2, 1, v0", "v_sub_u32 v2, s14, v2", "v_add_u32 v3, -6, v2", "v_min_u32 v2, v2, v3",
              "v_add_u32 v1, 4, v2", "v_min_u32 v2, 4, v2", "v_mov_b32 v3, s14", "v_add_u32 v3, -4, v3", "v_cmp_gt_u32 vcc, 12, v0",
              "v_cndmask_b32 v1, v3, v1, vcc", "v_cndmask_b32 v2, %d, v2, vcc" % SB_, "v_cmp_gt_u32 vcc, 16, v0", "v_cndmask_b32 v2, 9, v2, vcc",
              "v_cmp_ne_u32 vcc, s%d, v0" % sS, "v_cndmask_b32 v2, 9, v2, vcc", "v_mul_u32_u24 v3, %d, v0" % FS, "v_and_b32 v1, 7, v1", "v_lshl_add_u32 v1, v1, 7, v3", "v_add_u32 v%d, s13, v1" % vPA]
             + ["v_cmp_eq_u32 s[%d:%d], %d, v2" % (MK[b], MK[b]+1, b) for b in range(5)], g2(2)+5, g2(2)+22)
    G.spread(unpack(XD+12, XD+9) + unpack(XD+10, XD+8) + sum((baseterm(BASE+2*q, XD+q, XD+10+2*(q & 1), XD+16+2*(q//2), T+2*(q & 1)) for q in range(8)), []), g2(2)+26, g2(4)+30)
    G.add(g2(4)+30, "pre", ["s_lshl_b32 s12, s%d, 12" % sW])
    G.spread(["v_and_b32 v1, 31, v5", "v_and_b32 v2, 7, v5", "v_xor_b32 v2, v2, v6", "v_lshlrev_b32 v2, 4, v2", "v_lshl_add_u32 v1, v1, 7, v2", "v_add_u32 v%d, s12, v1" % vTW,
              "v_lshrrev_b32 v1, 3, v0", "v_xor_b32 v2, v1, v0", "v_and_b32 v2, 7, v2", "v_lshlrev_b32 v2, 4, v2", "v_lshl_add_u32 v2, v1, 7, v2", "v_add_u32 v%d, s12, v2" % vTR]
             + ["v_xor_b32 v%d, %d, v%d" % (vO+a, 32*a, vTW) for a in (1, 2, 3)], g2(4)+31, g2(5)+4)
    for tg, it, a, b in sums: G.spread(it, a, b)
    for j in range(K0):
        p(center(j, T + 4*(j & 1), pk=True)); p(dmas(1 + j//6, j % 6, j % 6 + 1))
    p(WaitV("st0")); p("s_barrier"); p(pro); p(WaitL("f3"))
    gstamp(G, 0, 2); gstamp(G, 72, 3); gstamp(G, 432, 4)
    for sl in range(9): gstamp(G, g2(sl), 1+sl, 1)
    G.emit(p); stamp(p, 10, 1)
    report("ffn", G, 48)
    stamp(p, 5)
    p(WaitV("ps8")); p(flag(9))
    if NB == 3:
        polls[3].check(p); pre, lds = srcloads(3, 16); p(pre); p(lds, "ld3"); tail_bufs.append(16)
    p("s_mov_b32 s12, 0x3f80\ns_mov_b32 s13, 0x3f800000\ns_xor_b32 s14, s%d, 1\ns_lshl_b32 s14, s14, 12\nv_mov_b32 v1, 0x%x" % (sS, f2u(-1/LOG2E)))
    for r in range(16): p("v_add_f32 v%d, v%d, v%d" % (RS+r, RS+r, ACC[0][1]+r))
    for k, d_ in enumerate(tail_bufs):
        if k == OPT.get("tp", 2): p(polls[4].load())
        for a in range(2):
            for h in range(2): p(psum(RS+8*h, d_+8*a+4*h, T, dot=True))
    polls[4].check(p)
    stamp(p, 6)
    pre, lds = srcloads(4, LB); p(pre); p(lds, "ld4")
    p([pload(LB+16+4*h, vL, 14, 1024*h) for h in range(2)], "ld5")
    for a in range(3):
        for h in range(2): p(psum(RS+8*h, LB+8*a+4*h, T, dot=True))
    stamp(p, 7)
    for a in range(4): p("ds_write_b128 v%d, %s" % (vO+a if a else vTW, V(RS+4*a)))
    for i in range(4): p("ds_read_b128 %s, v%d offset:%d" % (V(LB+4*i), vTR, 1024*i))
    for i in range(4):
        for r in range(4): p("v_fma_f32 v%d, v%d, v1, v%d" % (LB+4*i+r, LB+4*i+r, BASE+4*i+r))
        p("s_mov_b32 s11, %d\nbuffer_store_dwordx4 %s, v%d, %s, s11 offen%s" % (i*8*2304, V(LB+4*i), vO, S(SC), OPT["outflav"]))
    stamp(p, 8)
    stamp_flush(p, 9)
    p("s_endpgm")
    for x in [pc] + polls: p(Reset()); p(x.spin())

def cmul(d, a, b, t):
    return ["v_pk_mul_f32 %s, %s, %s op_sel:[1,1] op_sel_hi:[0,1] neg_lo:[1,0]" % (V(t, 2), V(a, 2), V(b, 2)),
            "v_pk_fma_f32 %s, %s, %s, %s op_sel_hi:[1,0,1]" % (V(d, 2), V(a, 2), V(b, 2), V(t, 2))]
def cfma(d, a, h, u):
    return ["v_pk_fma_f32 %s, %s, %s, %s op_sel_hi:[1,0,1]" % (V(d, 2), V(h, 2), V(a, 2), V(u, 2)),
            "v_pk_fma_f32 %s, %s, %s, %s op_sel:[1,1,0] op_sel_hi:[0,1,1] neg_lo:[1,0,0]" % (V(d, 2), V(h, 2), V(a, 2), V(d, 2))]
def ssm(p):
    DV, DV2, RB, TS, T, PR, E, U = 13, 22, 32, 44, 52, 64, 84, 96
    PAR = XA; EX = XA + 4096
    FB = 144; NFB = 18; AH = 3
    XP = [2, 5, 8, 0, 3, 6, 1, 4, 7] if OPT["rot"] else list(range(9))
    p("L_ssm:")
    xso = lambda c: ["s_movk_i32 s%d, %d" % (sOFF, 128*XP[c])]
    for c in range(AH): xissue(p, c, xso(c))
    srd(p, SWS, 44, 0x10000000)
    p("buffer_store_dwordx4 v[10:13], v44, %s, 0 offen sc1" % S(SWS), tag="clr")
    p("s_cmp_ge_u32 s%d, 2\ns_cselect_b32 s%d, s24, s22\ns_cselect_b32 s%d, s25, s23\ns_cselect_b32 s%d, s28, s26\ns_cselect_b32 s%d, s29, s27" % (sW, SA, SA+1, SB, SB+1))
    p("s_mov_b32 s%d, %d\ns_mov_b32 s%d, 0x20000\ns_mov_b32 s%d, %d\ns_mov_b32 s%d, 0x20000" % (SA+2, 576*1152, SA+3, SB+2, 576*1152, SB+3))
    p("s_lshl_b32 s34, s%d, 7\ns_lshl_b32 s35, s%d, 4\ns_add_u32 s35, s35, 512" % (sG, sG))
    p("s_lshl_b32 s14, s%d, 6\nv_add_u32 v1, s14, v0\nv_min_u32 v1, 143, v1\nv_lshlrev_b32 v%d, 3, v1" % (sW, TS+6))
    p("s_sub_u32 s13, s35, 128\ns_cmp_ge_u32 s%d, 2\ns_cselect_b32 s13, s13, s34\nv_add_u32 v1, s13, v1\nv_lshlrev_b32 v1, 1, v1" % sW)
    p("global_load_ushort v%d, v1, s[18:19]\nglobal_load_ushort v%d, v1, s[20:21]\nglobal_load_ushort v%d, v1, s[30:31]" % (T, T+1, T+2), tag="par")
    p("s_lshl_b32 s14, s%d, 15\ns_add_u32 s14, s14, 0x%x\ns_add_u32 s%d, s44, s14\ns_addc_u32 s%d, s45, 0\ns_mov_b32 s%d, 32768\ns_mov_b32 s%d, 0x20000" % (sG, CARRY, SC, SC+1, SC+2, SC+3))
    p("s_lshl_b32 s36, s%d, 11\nv_mov_b32 v2, -1\nv_mov_b32 v3, -1\nbuffer_store_dwordx2 v[2:3], v%d, %s, s36 offen sc1" % (sM, TS+6, S(SC)), tag="clr")
    p("v_lshrrev_b32 v1, 3, v0\nv_mul_u32_u24 v1, 1152, v1\nv_and_b32 v2, 7, v0\nv_lshrrev_b32 v3, 4, v0\nv_xor_b32 v2, v2, v3")
    p("s_and_b32 s37, s%d, 1\ns_lshl_b32 s14, s37, 2\nv_xor_b32 v2, s14, v2\nv_lshl_add_u32 v3, v2, 4, v1\nv_xor_b32 v2, 4, v2\nv_lshl_add_u32 v2, v2, 4, v1" % sW)
    p("s_mul_i32 s14, s%d, 72\ns_add_u32 s14, s14, s34\ns_cmp_ge_u32 s%d, 2\ns_cselect_b32 s13, 160, 0\ns_sub_i32 s14, s14, s13" % (sW, sW))
    p("s_cmp_eq_u32 s%d, 2\ns_cselect_b32 s12, s35, s14\ns_sub_u32 s13, s35, 56\ns_cmp_eq_u32 s%d, 1\ns_cselect_b32 s13, s13, s14" % (sW, sW))
    for i in range(9):
        p("s_add_i32 s11, s%d, %d\ns_mul_i32 s11, s11, 1152\nv_add_u32 v%d, s11, v%d" % (12 if i < 2 else (13 if i > 6 else 14), 8*i, DV+i, 2 if i & 1 else 3))
    p("s_mul_i32 s%d, s%d, 9216" % (sWB, sW))
    p("s_mul_i32 s14, s37, %d\ns_lshl_b32 s13, s34, 1\ns_add_u32 s13, s13, s14\ns_lshl_b32 s12, s35, 1\ns_add_u32 s12, s12, s14" % (32*1152))
    p("v_lshrrev_b32 v1, 4, v0\nv_and_b32 v2, 15, v0\nv_xor_b32 v2, v2, v1\nv_mul_u32_u24 v1, 1152, v1\nv_add_u32 v1, s13, v1")
    for i in range(4):
        p("v_xor_b32 v3, %d, v2\nv_lshl_add_u32 v3, v3, 4, v1\nv_add_u32 v%d, %d, v3\nv_add_u32 v%d, %d, v3" % (4*i, DV2+i, 4*i*1152, DV2+4+i, (16+4*i)*1152))
    p("v_lshrrev_b32 v1, 1, v0\nv_mul_u32_u24 v1, 1152, v1\nv_lshrrev_b32 v2, 4, v0\nv_xor_b32 v2, v2, v0\nv_and_b32 v2, 1, v2\nv_lshl_add_u32 v1, v2, 4, v1\nv_add_u32 v%d, s12, v1" % (DV2+8))
    p("s_and_b32 s13, s%d, 7\ns_lshl_b32 s13, s13, 1\ns_add_u32 s13, s13, s37\ns_mul_i32 s13, s13, 36\ns_lshl_b32 s14, s34, 1" % sM)
    p("v_min_u32 v1, 17, v0\nv_mul_u32_u24 v2, 86, v1\nv_lshrrev_b32 v2, 8, v2\nv_mul_u32_u24 v3, 3, v2\nv_sub_u32 v1, v1, v3\nv_add_u32 v2, s13, v2\nv_mul_u32_u24 v2, 1152, v2")
    p("v_cmp_eq_u32 vcc, 2, v1\nv_lshl_add_u32 v1, v1, 7, s14\nv_mov_b32 v3, 0x400\nv_cndmask_b32 v1, v1, v3, vcc\nv_add_u32 v31, v1, v2")
    p("s_lshr_b32 s13, s13, 2\nv_min_u32 v1, 26, v0\nv_mul_u32_u24 v2, 57, v1\nv_lshrrev_b32 v2, 9, v2\nv_mul_u32_u24 v3, 9, v2\nv_sub_u32 v1, v1, v3\nv_add_u32 v1, s13, v1")
    p("s_sub_u32 s14, s35, 128\nv_mov_b32 v3, s14\nv_mov_b32 v51, s34\nv_cmp_gt_u32 vcc, 128, v1\nv_cndmask_b32 v3, v3, v51, vcc\nv_add_u32 v1, v1, v3\nv_mul_u32_u24 v1, 1152, v1\nv_mul_u32_u24 v2, 384, v2\nv_add_u32 v51, v1, v2")
    tb = lambda k: [touch("buffer_load_dword v4, v51, %s, 0 offen offset:%d" % (S(SA), 128*k))] if OPT["pf"] & 2 else []
    p("s_lshl_b32 s68, s%d, 3\ns_lshl_b32 s38, s%d, 4\ns_add_u32 s38, s38, 128" % (sM, sG))
    def dma(st, i):
        pre = []
        if st < 9: so = XP[st]*128; dv, sr = DV, SA
        else: so = (st-9)*64*1152; dv, sr = DV2, SB
        if i == 0: pre.append("s_mov_b32 s%d, 0x%x" % (sOFF, so))
        pre.append("s_add_u32 m0, s%d, 0x%x" % (sWB, (st % 4)*36864 + i*1024))
        return pre, I("buffer_load_dwordx4 v%d, %s, s%d offen lds" % (dv+i, S(sr), sOFF), "st%d" % st)
    def dmas(st, i0, i1):
        o = []
        for i in range(i0, i1):
            a, b = dma(st, i); o += a + [b]
        return o
    stats(p, xso, dmas(0, 0, 9), 1.0, AH, {OPT.get('t0', 2): tb(2), OPT.get('t1', 6): tb(0)})
    announce(p, "L_ssm_an", [38, 68])
    for jj in range(4): p("v_mov_b32 v%d, v%d" % (RB+4+jj, RB+jj))
    lr, li, dt = T, T+1, T+2
    P0 = PR
    par = ("v_lshlrev_b32 v%d, 16, v%d\nv_lshlrev_b32 v%d, 16, v%d\nv_lshlrev_b32 v%d, 16, v%d\n" % (lr, lr, li, li, dt, dt) +
      "v_mul_f32 v%d, 0x%x, v%d\nv_exp_f32 v%d, v%d\nv_cvt_pk_bf16_f32 v%d, v%d, v%d\nv_and_b32 v%d, 0xffff0000, v%d\n" % (dt, f2u(LOG2E), dt, dt, dt, dt, dt, dt, dt, dt) +
      "v_mul_f32 v1, v%d, v%d\nv_mul_f32 v2, v%d, v%d\nv_mul_f32 v1, 0x%x, v1\nv_mul_f32 v2, 0.15915494, v2\nv_exp_f32 v1, v1\nv_fract_f32 v2, v2\n" % (dt, lr, dt, li, f2u(LOG2E)) +
      "v_cos_f32 v3, v2\nv_sin_f32 v2, v2\nv_mul_f32 v%d, v1, v3\nv_mul_f32 v%d, v1, v2\n" % (P0, P0+1) +
      "v_mul_f32 v1, v%d, v%d\nv_fmac_f32 v1, v%d, v%d\nv_rcp_f32 v1, v1\nv_add_f32 v2, -1.0, v%d\nv_mul_f32 v1, 0x%x, v1\n" % (lr, lr, li, li, P0, f2u(-2*LOG2E)) +
      "v_mul_f32 v3, v2, v%d\nv_fmac_f32 v3, v%d, v%d\nv_mul_f32 v%d, v%d, v%d\nv_fma_f32 v%d, -v2, v%d, v%d\n" % (lr, P0+1, li, dt, P0+1, lr, dt, li, dt) +
      "v_mul_f32 v%d, v3, v1\nv_mul_f32 v%d, v%d, v1\nv_mov_b32 v%d, v%d\nv_mov_b32 v%d, v%d\n" % (P0+2, P0+3, dt, TS+4, P0+2, TS+5, P0+3) +
      "v_lshlrev_b32 v3, 1, v%d\nv_add_u32 v3, 0x%x, v3" % (TS+6, PAR)).split("\n")
    def csq(d, a): return ["v_mul_f32 v1, v%d, v%d" % (a+1, a+1), "v_mul_f32 v2, v%d, v%d" % (a, a+1), "v_fma_f32 v%d, v%d, v%d, -v1" % (d, a, a), "v_add_f32 v%d, v2, v2" % (d+1)]
    par2 = csq(TS, P0) + csq(TS, TS) + csq(TS, TS) + csq(TS, TS) + csq(TS+2, TS) + csq(TS+2, TS+2) + csq(TS+2, TS+2)
    TO = [0, 5, 1, 6, 2, 7, 3, 8, 4]
    mf = []; fr = []
    for j, t in [(j, t) for j in range(32) for t in range(9)] + [(j, t) for t in TO for j in range(32, 36)]:
        n = len(mf); c = A(16*t, 16)
        mf.append("v_mfma_f32_32x32x16_bf16 %s, %s, %s, %s" % (c, V(XN+4*j), A(FB+4*(n % NFB)), c if j else "0")); fr.append((j, t))
    G = Gaps(mf)
    L = 10; PS = 3
    def rd(n):
        j, t = fr[n]
        base = RB + (j & 3) + (0 if j >= 32 else 4)
        return ["ds_read_b128 %s, v%d offset:%d" % (A(FB+4*(n % NFB)), base, t*4096)]
    gate = lambda n: 36*(n//36) - L + PS
    def ring(G, st0, nst, last):
        left = []
        for k in range(nst):
            st = st0+k; g = 36*(k+1) - L + PS
            if st+1 <= last:
                G.add(g, "pre", WaitL("f%d" % (36*k+35))); G.add(g, "pre", WaitV("st%d" % (st+1))); G.add(g, "pre", "s_barrier")
            if st+4 <= last:
                for i in range(9):
                    a, b = dma(st+4, i); gg = g+1+3*i
                    if gg < len(G.mf): G.add(gg, "pre", a); G.add(gg, "vm", b)
                    else: left += a + [b]
        return left
    for i in range(18):
        a, b = dma(2 + i//9, i % 9); gg = 1 + (3*i)//2; G.add(gg, "pre", a); G.add(gg, "vm", b)
    left = ring(G, 0, 9, 17)
    G.add(28, "vm", tb(1))
    if OPT["pf"] & 1:
        for t in range(6):
            g = 94 + 36*(t//2) + 3*(t & 1)
            G.add(g, "pre", "s_mov_b32 s11, %d" % (t*6*1152)); G.add(g, "vm", touch("buffer_load_dword v4, v31, %s, s11 offen" % S(SB)))
    pc0 = Poll("L_sc0", "global_load_dword v41, v40, s[42:43] sc1", "v_cmp_gt_u32 vcc, 16, v41", "exec")
    G.add(200, "va", ["v_mov_b32 v40, s38", "v_mov_b32 v41, s68", "v_cmp_gt_u32 vcc, 32, v0"]); G.add(201, "va", "v_cndmask_b32 v40, v40, v41, vcc")
    pc0.place(G, 206, 242)
    G.add(41, "ds", "ds_write_b128 v3, %s" % V(P0))
    G.add(268, "va", ["v_and_b32 v1, 31, v0", "v_lshlrev_b32 v2, 4, v1", "v_add_u32 v2, 0x%x, v2" % PAR])
    for k in range(5): G.add(270+k, "ds", "ds_read_b128 %s, v2 offset:%d" % (V(PR+4*k), 512*k))
    G.add(270, "pre", "s_lshl_b32 s14, s%d, 1" % sW)
    G.add(276, "va", ["v_add_u32 v3, s14, v6", "v_mul_u32_u24 v3, 1280, v3"]); G.add(277, "va", ["v_lshl_add_u32 v3, v1, 3, v3", "v_add_u32 v31, 0x%x, v3" % EX, "v_add_u32 v51, 0x%x, v%d" % (EX, TS+6)])
    pro, first, last = place_reads(G, 324, rd, L, {}, 2, 4, NFB, gate)
    for st in range(7):
        for jj in range(4):
            g = max(0, last[36*st+9*jj+8]) + 2; assert g < first[36*st+36+9*jj]
            G.add(g, "va", "v_add_u32 v%d, 0x%x, v%d" % (RB+4+jj, ((st+1) % 4)*36864, RB+jj))
    K0 = OPT.get("sk0", 5)
    G.spread(par, 0, 40); G.spread(par2, 42, 80)
    for j in range(K0, 36): G.spread(center(j, T + 4 + 4*(j & 1)), (j-K0)*282//(36-K0), (j-K0+1)*282//(36-K0))
    def ard(t):
        k, c = (t, 0) if t < 4 else ((t-5, 1) if t > 4 else (4, 0))
        o = ["v_accvgpr_read_b32 v%d, a%d" % (U+32*k+2*r+c, 16*t+r) for r in range(16)]
        if t == 4: o += ["v_accvgpr_read_b32 v%d, a%d" % (U+128+2*r+1, 64+r) for r in range(16)]
        return o
    for n in range(7): G.spread(ard(TO[n]), 288+4*n+6, min(324, 288+4*n+10))
    for j in range(K0):
        p(center(j, T+4+4*(j & 1), pk=True)); p(dmas(1, 2*j, min(9, 2*j+2)))
    p(WaitV("st0")); p("s_barrier"); p(pro); p(WaitL("f3"))
    gstamp(G, 0, 2)
    G.emit(p); report("ssm1", G, 36)
    p(ard(8)); p(left); p(ard(4))
    stamp(p, 3)
    for r in range(16): p("v_permlane16_swap_b32 v%d, v%d" % (U+128+2*r, U+128+2*r+1))
    for t in range(1, 16):
        seqs = []
        for k in range(5):
            d = (E if t & 1 else T) + 2*k
            h = U+32*k if t == 1 else (T if t & 1 else E) + 2*k
            seqs.append(cfma(d, PR+4*k, h, U+32*k+2*t))
        for q in range(2):
            for s_ in seqs: p(s_[q])
    for k in range(5): p("ds_write_b64 v31, %s offset:%d" % (V(E+2*k, 2), 256*k))
    p("s_waitcnt lgkmcnt(0)\ns_barrier")
    es = [T, T+2, T+4, T+6, T+8, T+10, E, E+2]
    p("s_cmp_eq_u32 s%d, 3\ns_cbranch_scc1 L_ssm_s1" % sW)
    for g in range(8): p("ds_read_b64 %s, v51 offset:%d" % (V(es[g], 2), 1280*g))
    cur = es[0]
    for g in range(1, 8):
        d = E+4 + 2*(g & 1); p(cfma(d, TS, cur, es[g])); cur = d
    p("v_min_u32 v%d, -2, v%d\nv_min_u32 v%d, -2, v%d" % (cur, cur, cur+1, cur+1))
    p("buffer_store_dwordx2 %s, v%d, %s, s36 offen sc1" % (V(cur, 2), TS+6, S(SC)))
    p("L_ssm_s1:")
    stamp(p, 4)
    def coef(k, tmp):
        for t in range(0, 16, len(tmp)):
            sq = [cmul(U+32*k+2*(t+q), U+32*k+2*(t+q), PR+4*k+2, tmp[q]) for q in range(len(tmp))]
            for q in range(2): p([x[q] for x in sq])
    coef(0, [14, 16, 18, 20]); coef(1, [14, 16, 18, 20]); coef(2, [14, 16, 18, 20])
    cr = [14, 16, 18, 20, 32, 34, 36, 38, 40, 42, 10, 2, PR+2, PR+6, PR+10]
    def cload():
        p("v_add_u32 v1, s14, v%d" % (TS+6))
        for t in range(15): p("buffer_load_dwordx2 %s, v1, %s, 0 offen sc1\nv_add_u32 v1, 2048, v1" % (V(cr[t], 2), S(SC)))
    p("s_sub_u32 s14, s36, %d\ns_cmp_eq_u32 s%d, 3\ns_cbranch_scc1 L_ssm_s1b" % (15*2048, sW))
    cload()
    p("L_ssm_s1b:")
    coef(3, [E+4, E+6, E+8, E+10]); coef(4, [E+4, E+6, E+8, E+10])
    p("s_cmp_eq_u32 s%d, 3\ns_cbranch_scc1 L_ssm_s2\ns_branch L_ssm_p2\nL_ssm_p1:" % sW)
    p(Reset()); cload()
    p("L_ssm_p2:\ns_waitcnt vmcnt(0)\nv_max_u32 v1, v%d, v%d" % (cr[0], cr[0]+1))
    for t in range(1, 15): p("v_max3_u32 v1, v1, v%d, v%d" % (cr[t], cr[t]+1))
    p("v_cmp_eq_u32 vcc, -1, v1\ns_add_u32 s69, s69, 1\ns_cmp_lt_u32 s69, 0x40000\ns_cselect_b64 s[12:13], -1, 0\ns_and_b64 vcc, vcc, s[12:13]\ns_cbranch_scc1 L_ssm_p1")
    cur = cr[0]
    for t in range(1, 15):
        d = E+4 + 2*(t & 1); p(cfma(d, TS+2, cur, cr[t])); cur = d
    for g in range(8):
        nx = []
        if g < 7:
            d = E+4 + (2 if cur == E+4 else 0); nx = cfma(d, TS, cur, es[g])
        cm = cmul(14+2*(g & 1), cur, TS+4, 18)
        p([x for pair in zip(nx, cm) for x in pair] if nx else cm)
        p("ds_write_b64 v51, %s offset:%d" % (V(14+2*(g & 1), 2), 1280*g))
        cur = d
    p("L_ssm_s2:\ns_waitcnt vmcnt(0) lgkmcnt(0)\ns_barrier")
    stamp(p, 5)
    for k in range(5): p("ds_read_b64 %s, v31 offset:%d" % (V(E+2*k, 2), 256*k))
    p("s_lshl_b32 s14, s%d, 12\ns_add_u32 s14, s14, 0x%x" % (sW, XA))
    p("v_and_b32 v1, 31, v0\nv_bfe_u32 v2, v0, 1, 2\nv_lshlrev_b32 v3, 1, v6\nv_xor_b32 v2, v2, v3\nv_lshlrev_b32 v1, 6, v1\nv_lshl_add_u32 v1, v2, 4, v1\nv_add_u32 v14, s14, v1\nv_xor_b32 v15, 16, v14")
    p("v_bfe_u32 v1, v0, 2, 2\nv_lshl_add_u32 v1, v6, 3, v1\nv_lshlrev_b32 v1, 6, v1\nv_and_b32 v2, 1, v0\nv_lshlrev_b32 v2, 1, v2\nv_bfe_u32 v3, v0, 4, 1\nv_add_u32 v2, v2, v3")
    p("v_bfe_u32 v3, v0, 3, 1\nv_xor_b32 v2, v2, v3\nv_lshl_add_u32 v1, v2, 4, v1\nv_bfe_u32 v3, v0, 1, 1\nv_lshl_add_u32 v1, v3, 3, v1\nv_add_u32 v16, s14, v1\nv_xor_b32 v17, 32, v16\nv_add_u32 v17, 256, v17")
    p("s_waitcnt lgkmcnt(0)\ns_barrier")
    HS = 0
    for t in range(16):
        sq = [cfma(U+32*k+2*t, PR+4*k, E+2*k if t == 0 else U+32*k+2*t-2, U+32*k+2*t) for k in range(5)]
        for q in range(2): p([x[q] for x in sq])
    RC = 40
    rcs = ["v_and_b32 v1, 31, v0", "v_and_b32 v2, 15, v0", "v_xor_b32 v2, v2, v6", "v_lshlrev_b32 v3, 8, v1", "v_add_u32 v3, 0x%x, v3" % 36864]
    for j in range(8): rcs += ["v_xor_b32 v%d, %d, v2" % (RC+j, 2*j), "v_lshl_add_u32 v%d, v%d, 4, v3" % (RC+j, RC+j)]
    rcs += ["v_bfe_u32 v2, v0, 3, 1", "v_xor_b32 v2, v2, v6", "v_lshlrev_b32 v2, 4, v2", "v_lshl_add_u32 v2, v1, 5, v2", "v_add_u32 v%d, 0x%x, v2" % (RC+8, 36864+8192)]
    for k in range(5):
        b = U+32*k; c = T if k & 1 else 32
        for hh in range(2):
            for q in range(4*hh, 4*hh+4): p("v_cvt_pk_bf16_f32 v%d, -v%d, -v%d" % (c+q, b+4*q+1, b+4*q+3))
            p("ds_write_b128 v%d, %s offset:2048" % (14+hh, V(c+4*hh)))
        for hh in range(2):
            for q in range(4*hh, 4*hh+4): p("v_cvt_pk_bf16_f32 v%d, v%d, v%d" % (b+q, b+4*q, b+4*q+2))
            p("ds_write_b128 v%d, %s" % (14+hh, V(b+4*hh)))
        for comp in range(2):
            for jl in range(2 if k < 4 else 1):
                h = HS + comp*36 + 4*(2*k+jl)
                p("ds_read_b64_tr_b16 %s, v16 offset:%d\nds_read_b64_tr_b16 %s, v17 offset:%d" % (A(h, 2), comp*2048+jl*1024, A(h+2, 2), comp*2048+jl*1024))
        if k == 0: p(rcs)
    ACC = [[96, 112], [128, 144]]; PK = 64; RS = 160; LB = 208; LB2 = None; BASE = 184
    V8 = 13; vPA, vFL, vL = 14, 15, 17
    XD = LB
    mf = []
    for dp in range(9):
        for kk in range(18):
            for u in range(2):
                n = len(mf); c = V(ACC[dp & 1][u], 16)
                mf.append("v_mfma_f32_32x32x16_bf16 %s, %s, %s, %s" % (c, A(FB+4*(n % NFB)), A(HS+4*kk), c if kk else "0"))
    G = Gaps(mf)
    def rd2(n):
        dp, r = divmod(n, 36); kk, u = divmod(r, 2); comp, j = divmod(kk, 9)
        return ["ds_read_b128 %s, v%d offset:%d" % (A(FB+4*(n % NFB)), RC+j, comp*18432+u*9216)]
    avoid = {}; late = []
    assert not ring(G, 9, 9, 17)
    flag = lambda n: [I("buffer_store_dword v7, v7, %s, 0 offen offset:%d sc1" % (S(SWS), 128*(n & 7)), "fl%d" % n)]
    for dp in range(1, 9):
        g = 36*dp
        G.add(g+2, "pre", "s_mov_b32 s%d, 0x%x" % (sST, (dp-1)*DS()))
        for f in range(4):
            gg = g+7+3*f
            G.add(gg, "vm", pstore(PK+4*f, V8, 1024*f), "ps%d" % (dp-1)); avoid[gg] = 0
            late.append((cvts(ACC[(dp-1) & 1][f//2], f & 1, PK+4*f), gg-2, gg))
        if dp <= 6:
            gf = g+37
            G.add(gf, "pre", WaitV("ps%d" % (dp-1))); G.add(gf, "vm", flag(dp))
    G.add(0, "pre", ["s_lshl_b32 s12, s%d, 12" % sS, "s_mul_i32 s13, s46, %d" % (16*FS), "s_add_u32 s13, s13, 0x%x" % FLAGS])
    G.add(1, "pre", ["s_mul_i32 s39, s%d, 96" % sG, "s_add_u32 s39, s39, 768", "s_mul_i32 s14, s%d, 3" % sG])
    su = ["v_add_u32 v%d, s12, v8" % V8, "v_cmp_gt_u32 vcc, 12, v0", "v_mul_u32_u24 v1, %d, v0" % FS, "v_mov_b32 v3, 3", "v_cndmask_b32 v2, 7, v3, vcc", "v_lshl_add_u32 v1, v2, 7, v1", "v_add_u32 v%d, s13, v1" % vPA]
    for i in range(3):
        su += ["v_mov_b32 v1, s14", "v_add_u32 v1, %d, v1" % (24+i), "v_lshrrev_b32 v2, 2, v1", "v_mul_u32_u24 v2, %d, v2" % DS(), "v_and_b32 v1, 3, v1", "v_lshl_add_u32 v1, v1, 10, v2", "v_add_u32 v%d, v1, v8" % (vL+i)]
    G.add(4, "pre", ["s_mov_b64 s[94:95], 0xfff", "s_mov_b64 s[96:97], 0xf000"])
    pa = Poll("L_sa", "buffer_load_dword v%d, v%d, %s, 0 offen sc1" % (vFL, vPA, S(SWS)), "v_cmp_eq_u32 vcc, 0, v%d" % vFL, "s[94:95]")
    pb = Poll("L_sb", "buffer_load_dword v%d, v%d, %s, 0 offen sc1" % (vFL, vPA, S(SWS)), "v_cmp_eq_u32 vcc, 0, v%d" % vFL, "s[96:97]")
    pa.place(G, 272, 296)
    def sload(s_): return ["s_mov_b32 s11, %d" % (s_*4096)], [I(pload(sbuf(s_)+4*i, vL+i, 11, 0), "ld%d" % s_) for i in range(3)]
    sbuf = lambda s_: [LB, LB+12, LB+24, LB+36, 128, 140, 20, 32][s_ % 8]
    for s_ in range(4):
        a, b = sload(s_); g = 306 + 4*s_
        G.add(g, "pre", a)
        for i in range(3): G.add(g+i, "vm", b[i])
    vTW, vTR, vO, vS = 80, 81, 84, 87
    G.add(20, "pre", ["s_mul_i32 s12, s%d, 6656" % sW, "s_add_u32 s12, s12, %d" % (2*36864)])
    G.add(21, "pre", ["s_lshl_b32 s13, s46, 5", "s_lshl_b32 s14, s%d, 12" % sW, "s_add_u32 s14, s14, 0x%x" % XA])
    tr = ["v_mov_b32 v10, v9", "v_mov_b32 v11, v12", "v_and_b32 v1, 31, v5", "v_lshl_add_u32 v16, v1, 3, s14", "v_mul_u32_u24 v1, 208, v1", "v_lshl_add_u32 v1, v6, 4, v1", "v_add_u32 v%d, s12, v1" % vTW]
    for i in range(3):
        tr += ["v_add_u32 v1, %d, v0" % (64*i), "v_mul_u32_u24 v2, 171, v1", "v_lshrrev_b32 v2, 11, v2", "v_mul_u32_u24 v3, 12, v2", "v_sub_u32 v1, v1, v3",
               "v_lshl_add_u32 v%d, v2, 3, s14" % (vS+i), "v_lshl_add_u32 v%d, v1, 3, s39" % (93+i), "v_lshlrev_b32 v1, 4, v1",
               "v_mul_u32_u24 v3, 208, v2", "v_add3_u32 v%d, v3, v1, s12" % (vTR+i), "v_add_u32 v2, s13, v2", "v_mul_u32_u24 v2, 1152, v2", "v_add_u32 v%d, v2, v%d" % (90+i, 93+i),
               "v_lshlrev_b32 v%d, 1, v%d" % (vO+i, 90+i)]
    assert all((n*171) >> 11 == n//12 for n in range(192))
    G.add(56, "ds", "ds_write_b64 v16, v[10:11]"); avoid[56] = 0
    G.add(57, "pre", "s_movk_i32 s11, %d" % (16*1152))
    for q in range(6):
        G.add(57+q, "vm", "buffer_load_dwordx2 %s, v%d, %s, %s offen" % (V(XD+2*q, 2), 90 + q % 3, S(SX), "s11" if q >= 3 else "0"), "xb")
        G.add(58+q, "ds", "ds_read_b64 %s, v%d offset:%d" % (V(XD+12+2*q, 2), vS + q % 3, 128*(q//3)))
    for q in range(3): G.add(92+q, "vm", "global_load_dwordx2 %s, v%d, s[32:33]" % (V(XD+24+2*q, 2), 93+q), "xb")
    G.add(128, "pre", WaitV("xb"))
    pro, first, last = place_reads(G, 324, rd2, L, avoid, 2, 4, NFB, gate)
    for dp in range(8):
        for j in range(9):
            g = last[36*dp+19+2*j] + 1
            if not avoid.get(g, 1): g += 1
            assert g < first[36*dp+36+2*j]
            G.add(g, "va", "v_add_u32 v%d, 0x%x, v%d" % (RC+j, (36864 if (dp+10) % 4 else -3*36864) & 0xffffffff, RC+j))
    for it, a, b in late: G.spread(it, a, b)
    G.spread(su, 2, 19); G.spread(tr, 22, 55)
    G.spread(sum((unpack(XD+30+2*q, XD+24+q) for q in range(6)), []) +
             sum((baseterm(BASE+2*q, XD+q, XD+30+4*((q//2) % 3)+2*(q & 1), XD+12+2*(q//2), T+2*(q & 1)) for q in range(12)), []), 128, 290)
    G.spread(["v_mov_b32 v%d, 0" % (RS+r) for r in range(24)], 290, 322)
    p("s_waitcnt lgkmcnt(0)")
    stamp(p, 6)
    p(pro); p(WaitL("f3"))
    for sl in range(9): gstamp(G, 36*sl, 1+sl, 1)
    G.emit(p); report("ssm2", G, 36); stamp(p, 10, 1)
    stamp(p, 7)
    p("s_mov_b32 s%d, 0x%x" % (sST, 8*DS()))
    for f in range(4): p(cvts(ACC[0][f//2], f & 1, PK+4*f)); p(pstore(PK+4*f, V8, 1024*f), "ps8")
    for s_ in range(4, 8): p(sload(s_))
    srd(p, SC, 40, 2048*2304)
    p("s_mov_b32 s12, 0x3f80\ns_mov_b32 s13, 0x3f800000\nv_mov_b32 v1, 0x%x" % f2u(-1/LOG2E))
    def ssum(s_):
        for i in range(3): p(psum(RS+8*i, sbuf(s_)+4*i, T, dot=True))
    for s_ in range(4): ssum(s_)
    p(WaitV("ps8")); p(flag(7))
    for s_ in range(8, 12): p(sload(s_))
    for s_ in range(4, 8): ssum(s_)
    p(pb.load()); ssum(8); ssum(9); pb.check(p)
    stamp(p, 8)
    for s_ in range(12, 16): p(sload(s_))
    for s_ in range(10, 16): ssum(s_)
    for a in range(6): p("ds_write_b128 v%d, %s offset:%d" % (vTW, V(RS+4*a), 32*a))
    for i in range(6): p("ds_read_b128 %s, v%d offset:%d" % (V(LB+4*i), vTR + i % 3, (i//3)*16*208))
    p("s_mov_b32 s11, %d" % (16*2304))
    for i in range(6):
        for r in range(4): p("v_fma_f32 v%d, v%d, v1, v%d" % (LB+4*i+r, LB+4*i+r, BASE+4*i+r))
        p("buffer_store_dwordx4 %s, v%d, %s, %s offen%s" % (V(LB+4*i), vO + i % 3, S(SC), "s11" if i >= 3 else "0", OPT["outflav"]))
    stamp(p, 9)
    stamp_flush(p, 10)
    p("s_endpgm")
    for x in (pc0, pa, pb): p(Reset()); p(x.spin())

def main_kernel():
    p = Prog(); entry(p); ffn(p); t1 = p.finish()
    if OPT.get("verbose"): print("ffn", p.stats, file=sys.stderr)
    q = Prog(); entry(q); ssm(q); t2 = q.finish()
    if OPT.get("verbose"): print("ssm", q.stats, file=sys.stderr)
    return t1 + t2[t2.index("L_ssm:"):] + "L_code_end:\n    s_endpgm\n"

def build():
    K1 = NAME + "_kernel"
    ex = "  .amdhsa_float_denorm_mode_32 3\n"
    s = "; @launch grid=(256,1,1) block=(256,1,1) lds=163840\n"
    s += ".amdgcn_target \"amdgcn-amd-amdhsa--gfx950\"\n.text\n" + head(K1) + main_kernel()
    s += ".section .rodata,\"a\"\n.p2align 6\n" + kd(K1, 512, 256, 102, ex)
    return s
if __name__ == "__main__":
    out = sys.argv[1]
    for a in sys.argv[2:]:
        k, v = a.split("="); OPT[k] = int(v) if v.lstrip("-").isdigit() else (" " + v if v else "")
    open(out, "w").write(build())
```

```python
import sys, struct
from fw import *
from asmlib import NAME, kd, head
def f2u(x): return struct.unpack("<I", struct.pack("<f", x))[0]
LOG2E = 1.4426950408889634
CARRY = 0x2800000; FLAGS = 0x2900000; STAMP = 0x8000000
OPT = dict(stamp=0, pf=3, rot=1, outflav="")
sW, sM, sQ, sG, sS = 3, 4, 5, 6, 7
SX, SA, SB, SWS, SC = 48, 52, 56, 60, 64
sWB, sOFF, sST = 8, 9, 10
XN = 112
XA = 147456
FS = 1280
def DS(): return OPT.get('ds', 69632)
def srd(p, d, ptr, size):
    p("s_mov_b32 s%d, s%d\ns_mov_b32 s%d, s%d\ns_mov_b32 s%d, 0x%x\ns_mov_b32 s%d, 0x20000" % (d, ptr, d+1, ptr+1, d+2, size, d+3))
def S(d): return "s[%d:%d]" % (d, d+3)
def V(a, n=4): return "v[%d:%d]" % (a, a+n-1)
def A(a, n=4): return "a[%d:%d]" % (a, a+n-1)
def TM(): return "s_memtime" if OPT["stamp"] == 2 else "s_memrealtime"
def stx(i): return "%s s[%d:%d]" % (TM(), 70+2*i, 71+2*i)
def stamp(p, i, mode=0):
    if OPT["stamp"] and (OPT.get("smode", 0) == mode or i == 0): p(stx(i))
def gstamp(G, g, i, mode=0):
    if OPT["stamp"] and OPT.get("smode", 0) == mode: G.add(g, "pre", stx(i))
def stamp_flush(p, last, path):
    if not OPT["stamp"]: return
    p("s_waitcnt vmcnt(0)"); stamp(p, last); stamp(p, 11, 1); p("s_waitcnt lgkmcnt(0)")
    if "leak" in OPT:
        i = OPT["leak"] if OPT.get("lpath", 0) == path else 0
        p("s_add_u32 s12, s%d, 6000\nL_lk%d:\ns_sleep 4\ns_memrealtime s[14:15]\ns_waitcnt lgkmcnt(0)\ns_sub_u32 s14, s14, s12\ns_cmp_lt_i32 s14, 0\ns_cbranch_scc1 L_lk%d" % (70+2*i, path, path))
        return
    p("s_lshl_b32 s11, s2, 2\ns_add_u32 s11, s11, s%d\ns_lshl_b32 s11, s11, 7\ns_add_u32 s11, s11, 0x%x\nv_mov_b32 v1, 0" % (sW, STAMP))
    for i in range(12):
        p("v_mov_b32 v2, s%d\nv_mov_b32 v3, s%d\nbuffer_store_dwordx2 v[2:3], v1, %s, s11 offen offset:%d" % (70+2*i, 71+2*i, S(SWS), 8*i))
    p("v_mov_b32 v2, s69\nv_mov_b32 v3, 0\nbuffer_store_dwordx2 v[2:3], v1, %s, s11 offen offset:96" % S(SWS))
def touch(text):
    x = I(text, "pf"); x.W = set(); return x
def untracked(text):
    x = I("s_nop 0"); x.text = text; x.k = "sctl"; return x

def entry(p):
    p("s_cmp_ge_u32 s2, 256\ns_cbranch_scc0 L_go\ns_endpgm\nL_go:")
    stamp(p, 0)
    p("s_load_dwordx16 s[16:31], s[0:1], 0\ns_load_dwordx8 s[32:39], s[0:1], 64\ns_load_dwordx4 s[40:43], s[0:1], 96\ns_load_dwordx2 s[44:45], s[0:1], 112")
    p("s_getpc_b64 s[12:13]\nL_pc:")
    p("v_lshrrev_b32 v1, 6, v0\nv_and_b32 v0, 63, v0\nv_readfirstlane_b32 s%d, v1" % sW)
    p("s_lshr_b32 s11, s2, 3\ns_and_b32 s%d, s11, 3\ns_bfe_u32 s%d, s2, 0x20001" % (sQ, sG))
    p("s_and_b32 s14, s2, 1\ns_lshl_b32 s14, s14, 3\ns_lshr_b32 s%d, s11, 2\ns_add_u32 s%d, s%d, s14" % (sM, sM, sM))
    p("s_lshl_b32 s14, s11, 2\ns_add_u32 s14, s14, s%d\ns_mul_i32 s14, s14, 5" % sW)
    p("v_min_u32 v1, 4, v0\nv_add_u32 v1, s14, v1\nv_lshlrev_b32 v1, 7, v1\nv_min_u32 v1, L_code_end-L_pc-4, v1")
    p("v_mov_b32 v3, s13\nv_add_co_u32 v2, vcc, s12, v1\nv_addc_co_u32 v3, vcc, 0, v3, vcc")
    p(touch("global_load_dword v4, v[2:3], off"))
    p("s_lshl_b32 s46, s%d, 2\ns_add_u32 s46, s46, s%d\ns_lshl_b32 s15, s46, 5\nv_lshrrev_b32 v6, 5, v0" % (sM, sW))
    p("v_bfe_u32 v1, v0, 3, 2\nv_lshl_add_u32 v1, v6, 4, v1\nv_add_u32 v1, s15, v1\nv_mul_u32_u24 v1, 1152, v1")
    p("v_and_b32 v2, 7, v0\nv_lshrrev_b32 v3, 4, v0\nv_xor_b32 v2, v2, v3\nv_lshl_add_u32 v40, v2, 4, v1\nv_xor_b32 v2, 4, v2\nv_lshl_add_u32 v41, v2, 4, v1")
    p("v_add_u32 v42, %d, v40\nv_add_u32 v43, %d, v41\nv_add_u32 v41, %d, v41" % (2*3584, 3*3584, 3584))
    p("s_mul_i32 s47, s%d, 36864" % sW)
    p("v_bfe_u32 v5, v0, 2, 1\nv_lshlrev_b32 v5, 4, v5\nv_bfe_u32 v1, v0, 3, 2\nv_lshl_add_u32 v5, v1, 2, v5\nv_and_b32 v1, 3, v0\nv_add3_u32 v5, v5, v1, s15")
    p("v_and_b32 v1, 31, v0\nv_bfe_u32 v2, v0, 1, 3\nv_xor_b32 v2, v2, v6\nv_lshlrev_b32 v3, 7, v1")
    for jj in range(4): p("v_xor_b32 v7, %d, v2\nv_lshl_add_u32 v%d, v7, 4, v3\nv_add_u32 v%d, s47, v%d" % (2*jj, 32+jj, 36+jj, 32+jj))
    p("s_mul_i32 s15, s46, %d\nv_lshlrev_b32 v8, 4, v0\nv_add_u32 v8, s15, v8" % (9*DS()))
    p("s_mul_i32 s%d, s%d, 3\ns_add_u32 s%d, s%d, s%d\ns_add_u32 s14, s%d, 12\ns_cmp_eq_u32 s%d, 3\ns_cselect_b32 s%d, s14, s%d" % (sS, sG, sS, sS, sQ, sG, sQ, sS, sS))
    p("s_lshl_b32 s14, s46, 4\ns_add_u32 s14, s14, s%d\ns_mul_i32 s14, s14, %d\ns_add_u32 s14, s14, 0x%x" % (sS, FS, FLAGS))
    p("v_min_u32 v7, 1, v0\nv_lshlrev_b32 v7, 30, v7\nv_add_u32 v7, s14, v7\ns_mov_b32 s69, 0\nv_lshl_add_u32 v44, v0, 4, s14\nv_mov_b32 v13, 0")
    p("v_mov_b32 v9, 0\nv_mov_b32 v10, 0\nv_mov_b32 v11, 0\nv_mov_b32 v12, 0")
    p("s_waitcnt lgkmcnt(0)")
    srd(p, SX, 16, 2048*1152)
    p("s_cmp_eq_u32 s%d, 3\ns_cbranch_scc1 L_ssm" % sQ)

def xissue(p, c, so):
    p("s_add_u32 m0, s47, %d" % (4096*c)); p(so)
    for i in range(4):
        p("buffer_load_dwordx4 v%d, %s, s%d offen offset:%d lds" % (40+i, S(SX), sOFF, 1024*i), tag="x%d" % c)

def stats(p, xso, after_bar, scale, AH, extra={}):
    p("s_mov_b32 s14, 0x3f803f80")
    def dots(c):
        for x in range(XN+16*c, XN+16*c+16):
            p("v_dot2c_f32_bf16 v%d, s14, v%d\nv_dot2c_f32_bf16 v%d, v%d, v%d" % (9+(x & 1), x, 11+(x & 1), x, x))
    for c in range(9):
        p(WaitV("x%d" % c))
        for jj in range(4): p("ds_read_b128 %s, v%d offset:%d" % (V(XN+16*c+4*jj), 36+jj, 4096*c), tag="xr%d" % c)
        if c+AH < 9: xissue(p, c+AH, xso(c+AH))
        p(extra.get(c, []))
        p(WaitL("xr%d" % c))
        if c < 8: dots(c)
    p("s_barrier")
    stamp(p, 1)
    p(after_bar)
    dots(8)
    p("v_add_f32 v9, v9, v10\nv_add_f32 v11, v11, v12\nv_mov_b32 v10, v9\nv_mov_b32 v12, v11")
    p("v_permlane32_swap_b32 v9, v10\nv_permlane32_swap_b32 v11, v12\nv_add_f32 v9, v9, v10\nv_add_f32 v11, v11, v12")
    p("v_mul_f32 v9, 0x%x, v9\nv_mul_f32 v11, 0x%x, v11" % (f2u(1/576.), f2u(1/576.)))
    p("v_fma_f32 v12, -v9, v9, v11\nv_max_f32 v12, 0, v12\nv_cvt_pk_bf16_f32 v10, v9, v12")
    p("v_lshlrev_b32 v9, 16, v10\nv_and_b32 v12, 0xffff0000, v10\nv_add_f32 v12, 0x%x, v12" % f2u(1e-5))
    p("v_cvt_pk_bf16_f32 v12, v12, v12\nv_and_b32 v12, 0xffff0000, v12\nv_sqrt_f32 v12, v12")
    p("v_cvt_pk_bf16_f32 v12, v12, v12\nv_and_b32 v12, 0xffff0000, v12\nv_rcp_f32 v12, v12")
    p("v_mul_f32 v10, 0x%x, v12" % f2u(scale))
    p("v_mul_f32 v11, v10, v9\nv_xor_b32 v11, 0x80000000, v11\ns_mov_b32 s15, 0xffff0000")
def center(j, t, pk=False):
    o = []
    for h in range(2):
        a, b = XN+4*j+2*h, XN+4*j+2*h+1
        o += ["v_lshlrev_b32 v%d, 16, v%d" % (t, a), "v_and_b32 v%d, s15, v%d" % (t+1, a), "v_lshlrev_b32 v%d, 16, v%d" % (t+2, b), "v_and_b32 v%d, s15, v%d" % (t+3, b)]
        if pk: o += ["v_pk_fma_f32 %s, %s, v[10:11], v[10:11] op_sel:[0,0,1] op_sel_hi:[1,0,1]" % (V(t+k, 2), V(t+k, 2)) for k in (0, 2)]
        else: o += ["v_fma_f32 v%d, v%d, v10, v11" % (t+k, t+k) for k in range(4)]
        o += ["v_cvt_pk_bf16_f32 v%d, v%d, v%d" % (a, t, t+1), "v_cvt_pk_bf16_f32 v%d, v%d, v%d" % (b, t+2, t+3)]
    return o
def announce(p, name, offs):
    p("s_cmp_lg_u32 s%d, 0\ns_cbranch_scc1 %s\ns_mov_b64 exec, 1\nv_mov_b32 v2, 1" % (sW, name))
    for o in offs:
        p("v_mov_b32 v1, s%d" % o); p(untracked("global_atomic_add v1, v2, s[42:43]"))
    p("s_mov_b64 exec, -1\n%s:" % name)

def cvts(acc, h, pk): return ["v_cvt_pk_bf16_f32 v%d, v%d, v%d" % (pk+q, acc+8*h+2*q, acc+8*h+2*q+1) for q in range(4)]
def pstore(pk, vo, off): return "buffer_store_dwordx4 %s, v%d, %s, s%d offen offset:%d sc1" % (V(pk), vo, S(SWS), sST, off)
def pload(dst, vo, so, off): return "buffer_load_dwordx4 %s, v%d, %s, s%d offen offset:%d sc1" % (V(dst), vo, S(SWS), so, off)
def psum(rs, src, t, first=False, dot=False):
    o = []
    if dot:
        for q in range(4): o += ["v_dot2c_f32_bf16 v%d, s12, v%d" % (rs+2*q, src+q), "v_dot2c_f32_bf16 v%d, s13, v%d" % (rs+2*q+1, src+q)]
        return o
    if first:
        for q in range(4): o += ["v_lshlrev_b32 v%d, 16, v%d" % (rs+2*q, src+q), "v_and_b32 v%d, s15, v%d" % (rs+2*q+1, src+q)]
        return o
    for q in range(0, 4, 2):
        o += ["v_lshlrev_b32 v%d, 16, v%d" % (t, src+q), "v_lshlrev_b32 v%d, 16, v%d" % (t+1, src+q+1),
              "v_and_b32 v%d, s15, v%d" % (src+q, src+q), "v_and_b32 v%d, s15, v%d" % (src+q+1, src+q+1),
              "v_add_f32 v%d, v%d, v%d" % (rs+2*q, rs+2*q, t), "v_add_f32 v%d, v%d, v%d" % (rs+2*q+2, rs+2*q+2, t+1),
              "v_add_f32 v%d, v%d, v%d" % (rs+2*q+1, rs+2*q+1, src+q), "v_add_f32 v%d, v%d, v%d" % (rs+2*q+3, rs+2*q+3, src+q+1)]
    return o
def baseterm(b, x, dl, mr, t):
    return ["v_lshlrev_b32 v%d, 16, v%d" % (b, x), "v_and_b32 v%d, s15, v%d" % (b+1, x), "v_sub_f32 v%d, v%d, v%d" % (t, b, mr), "v_sub_f32 v%d, v%d, v%d" % (t+1, b+1, mr),
            "v_cvt_pk_bf16_f32 v%d, v%d, v%d" % (t, t, t+1), "v_and_b32 v%d, s15, v%d" % (t+1, t), "v_lshlrev_b32 v%d, 16, v%d" % (t, t),
            "v_mul_f32 v%d, v%d, v%d" % (t+1, t+1, mr+1), "v_mul_f32 v%d, v%d, v%d" % (t, t, mr+1),
            "v_cvt_pk_bf16_f32 v%d, v%d, v%d" % (t, t, t+1), "v_and_b32 v%d, s15, v%d" % (t+1, t), "v_lshlrev_b32 v%d, 16, v%d" % (t, t),
            "v_mul_f32 v%d, v%d, v%d" % (t+1, t+1, dl+1), "v_mul_f32 v%d, v%d, v%d" % (t, t, dl),
            "v_cvt_pk_bf16_f32 v%d, v%d, v%d" % (t, t, t+1), "v_and_b32 v%d, s15, v%d" % (t+1, t), "v_lshlrev_b32 v%d, 16, v%d" % (t, t),
            "v_add_f32 v%d, v%d, v%d" % (b+1, b+1, t+1), "v_add_f32 v%d, v%d, v%d" % (b, b, t)]
def unpack(d, x): return ["v_lshlrev_b32 v%d, 16, v%d" % (d, x), "v_and_b32 v%d, s15, v%d" % (d+1, x)]
class Poll:
    def __init__(self, name, load, cmp, mask):
        self.name, self.ld, self.cmp, self.mask = name, load, cmp, mask
    def load(self):
        if self.mask == "exec": return [I(self.ld, self.name)]
        return [I("s_mov_b64 exec, %s" % self.mask), I(self.ld, self.name), I("s_mov_b64 exec, -1")]
    def chk(self): return ["s_and_b64 vcc, vcc, %s" % self.mask, "s_cbranch_scc1 %s_spin" % self.name, "%s_ret:" % self.name]
    def place(self, G, g_load, g_chk):
        G.add(g_load, "vm", self.load())
        G.add(g_chk, "pre", WaitV(self.name)); G.add(g_chk, "va", self.cmp); G.add(g_chk+1, "pre", self.chk())
    def check(self, p): p(WaitV(self.name)); p(self.cmp); p(self.chk())
    def spin(self):
        return (["%s_spin:" % self.name] + self.load() + ["s_add_u32 s69, s69, 1\ns_cmp_lt_u32 s69, 0x40000\ns_cselect_b64 s[100:101], %s, 0\ns_waitcnt vmcnt(0)\n%s\ns_and_b64 vcc, vcc, s[100:101]\n"
                "s_cbranch_scc1 %s_spin\ns_branch %s_ret" % (self.mask, self.cmp, self.name, self.name)])

def place_reads(G, nfr, rd, L, avoid, maxper, wgrp, nfb, gate=None):
    items = [(n, I(x, "f%d" % n)) for n in range(nfr) for x in rd(n)]
    pos = [None]*len(items); used = {}
    g = 10**9
    for k in range(len(items)-1, -1, -1):
        g = min(g, items[k][0] - L)
        while g >= 0 and used.get(g, 0) >= avoid.get(g, maxper): g -= 1
        pos[k] = max(g, -1); used[g] = used.get(g, 0) + 1
    if gate:
        used = {}; g = -1
        for k, (n, x) in enumerate(items):
            g = max(g, pos[k], gate(n) if gate(n) > 0 else -1)
            while g >= 0 and used.get(g, 0) >= avoid.get(g, maxper): g += 1
            pos[k] = g; used[g] = used.get(g, 0) + 1
    pro = []; first = {}; last = {}
    for k, (n, x) in enumerate(items):
        assert n - nfb < max(pos[k], -1) + 1 or pos[k] < 0 and n < nfb, (n, pos[k])
        assert pos[k] <= n - wgrp - 1 or pos[k] < 0, (n, pos[k])
        first.setdefault(n, pos[k]); last[n] = pos[k]
        if pos[k] < 0: pro.append(x)
        else: G.add(pos[k], "ds", x)
    for g in range(wgrp-1, nfr-1, wgrp):
        G.g[g]["pre"].append(WaitL("f%d" % min(g+wgrp, nfr-1)))
    return pro, first, last
def report(nm, G, step):
    if OPT.get("verbose"):
        ld = [G.load(g) for g in range(len(G.mf))]
        print(nm, " ".join("%.1f/%.0f" % (sum(ld[b:b+step])/step, max(ld[b:b+step])) for b in range(0, len(ld), step)), file=sys.stderr)

def ffn(p):
    DV, RB, DV2, T = 13, 19, 25, 32
    ACC = [[40, 56], [72, 88]]
    HV = 104; FB = 128; NFB = 18; HA = 0
    sP = 15
    sK = 24
    MK = [28, 30, 94, 96, 98]
    AH = 3
    rot = OPT["rot"]
    p("s_mul_i32 s68, s%d, %d" % (sQ, 384*rot))
    def xso(c):
        if c == 0: return ["s_mov_b32 s%d, s68" % sOFF]
        o = ["s_add_u32 s%d, s%d, 128" % (sOFF, sOFF)]
        if c % 3 == 0: o += ["s_cmp_eq_u32 s%d, 1152" % sOFF, "s_cselect_b32 s%d, 0, s%d" % (sOFF, sOFF)]
        return o
    for c in range(AH): xissue(p, c, xso(c))
    srd(p, SWS, 44, 0x10000000)
    p("buffer_store_dwordx4 v[10:13], v44, %s, 0 offen sc1" % S(SWS), tag="clr")
    srd(p, SA, 36, 576*9216); srd(p, SB, 38, 4608*1152); srd(p, SC, 40, 2048*2304)
    for c in range(3):
        p("s_add_u32 s14, s%d, %d\ns_cmp_ge_u32 s14, 3\ns_cselect_b32 s13, 3, 0\ns_sub_u32 s14, s14, s13\ns_mul_i32 s%d, s14, %d" % (sQ, c, sK+c, 192*9216) if rot else "s_mov_b32 s%d, %d" % (sK+c, c*192*9216))
    p("s_lshr_b32 s%d, s%d, 1" % (sP+8, sS))
    for sl in range(3, 8):
        p("s_add_u32 s14, s%d, %d\ns_cmp_ge_u32 s14, 6\ns_cselect_b32 s13, 6, 0\ns_sub_u32 s%d, s14, s13" % (sP+8, sl-2, sP+sl))
    p("v_lshrrev_b32 v1, 3, v0\nv_and_b32 v2, 7, v0\nv_lshlrev_b32 v3, 1, v1\nv_and_b32 v3, 4, v3\nv_xor_b32 v2, v2, v3\nv_lshlrev_b32 v2, 4, v2")
    p("s_mul_i32 s14, s%d, 48\nv_add_u32 v1, s14, v1\nv_mul_u32_u24 v3, 9216, v1\ns_mul_i32 s14, s%d, 768\nv_add3_u32 v%d, v3, v2, s14" % (sW, sS, DV))
    p("v_mul_u32_u24 v3, 1152, v1\ns_mul_i32 s14, s%d, %d\nv_add3_u32 v%d, v3, v2, s14" % (sS, 384*1152, DV2))
    for i in range(1, 6):
        p("v_add_u32 v%d, %d, v%d\nv_add_u32 v%d, %d, v%d" % (DV+i, i*8*9216 - (i % 3)*1024, DV, DV2+i, i*8*1152 - (i % 3)*1024, DV2))
    p("s_mul_i32 s%d, s%d, 6144" % (sWB, sW))
    p("s_and_b32 s13, s46, 31\ns_mul_i32 s13, s13, 108\ns_mul_i32 s14, s%d, 3456\ns_add_u32 s13, s13, s14\nv_min_u32 v1, 17, v0\nv_add_u32 v1, s13, v1\nv_lshlrev_b32 v31, 7, v1" % sS)
    p("s_and_b32 s13, s46, 31\ns_mul_i32 s13, s13, 18\nv_min_u32 v1, 17, v0\nv_add_u32 v1, s13, v1\nv_mul_u32_u24 v1, 9216, v1\ns_mul_i32 s14, s%d, 768\nv_add_u32 v3, s14, v1" % sS)
    t1 = lambda pr: [touch("buffer_load_dword v4, v3, %s, 0 offen offset:%d" % (S(SA), 128*pr))] if OPT["pf"] & 2 else []
    def dma(st, i):
        pre = []
        if st < 18:
            dv, sr = DV, SA
            if i == 0: pre.append("s_add_u32 s%d, s%d, %d" % (sOFF, sK + st % 3, (st//3)*128))
        else:
            dv, sr = DV2, SB; sl, c = divmod(st-18, 2)
            if i == 0:
                if c: pre.append("s_add_u32 s%d, s%d, %d" % (sOFF, sOFF, 192*1152))
                elif sl < 3: pre.append("s_movk_i32 s%d, %d" % (sOFF, (6+sl)*128))
                else: pre.append("s_lshl_b32 s%d, s%d, 7" % (sOFF, sP+sl))
        if i % 3 == 0: pre.append("s_add_u32 m0, s%d, 0x%x" % (sWB, (st % 6)*24576 + i*1024))
        return pre, I("buffer_load_dwordx4 v%d, %s, s%d offen offset:%d lds" % (dv+i, S(sr), sOFF, (i % 3)*1024), "st%d" % st)
    def dmas(st, i0, i1):
        o = []
        for i in range(i0, i1):
            a, b = dma(st, i); o += a + [b]
        return o
    p("v_and_b32 v1, 15, v0\nv_lshrrev_b32 v1, 2, v1\nv_lshl_add_u32 v1, v6, 3, v1\nv_lshlrev_b32 v1, 7, v1")
    p("v_and_b32 v2, 3, v0\nv_lshl_add_u32 v1, v2, 3, v1\nv_bfe_u32 v2, v0, 4, 1\nv_lshl_add_u32 v1, v2, 5, v1\nv_bfe_u32 v2, v0, 3, 1\nv_lshl_add_u32 v%d, v2, 6, v1" % RB)
    p("v_xor_b32 v%d, 64, v%d" % (RB+1, RB))
    for k in range(2, 6): p("v_add_u32 v%d, 0x%x, v%d" % (RB+k, (k//2)*49152, RB+(k & 1)))
    p("s_and_b32 s27, s%d, 1\ns_lshl_b32 s68, s%d, 3" % (sS, sM))
    stats(p, xso, dmas(0, 0, 6), -LOG2E, AH, {OPT.get('t0', 2): t1(0), OPT.get('t1', 6): t1(1)})
    announce(p, "L_ffn_an", [68])
    RB2 = 112; V8 = 118; PK = 120; HL = 136; RS = 152; BASE = 168; LB = 184
    vPA, vFL, vFV, vL, vTW, vTR, vO = 232, 233, 13, 14, 234, 235, 236
    SB2 = 240
    XD = LB
    def hreg(U):
        if U == 0: return "v", HV
        if U >= 10: return "v", HL + 8*(U-10)
        return "a", HA + 8*(U-1)
    mf = []; fr = []
    for pr in range(6):
        for j in range(36):
            for u in range(2):
                n = len(mf); c = V(ACC[pr & 1][u], 16)
                mf.append("v_mfma_f32_32x32x16_bf16 %s, %s, %s, %s" % (c, A(FB+4*(n % NFB)), V(XN+4*j), c if j else "0"))
                fr.append((3*pr + j//12, j % 12, u))
    for dp in range(9):
        order = [(kk, u) for kk in range(24) for u in range(2)] if dp < 8 else [(kk, u) for u in range(2) for kk in range(24)]
        for kk, u in order:
            k, b = hreg(kk//2); hb = "%s[%d:%d]" % (k, b+4*(kk & 1), b+4*(kk & 1)+3)
            n = len(mf); c = V(ACC[dp & 1][u], 16)
            mf.append("v_mfma_f32_32x32x16_bf16 %s, %s, %s, %s" % (c, A(FB+4*(n % NFB)), hb, c if kk else "0"))
            fr.append((18 + 2*dp + kk//12, kk % 12, u))
    G = Gaps(mf); N = len(mf)
    def rd(n):
        st, jj, u = fr[n]; sl = st % 6; fb = FB+4*(n % NFB)
        base = (RB if st < 18 else RB2) + 2*(sl//2) + u
        off = (sl & 1)*24576 + jj*2048; dq = 512 if st < 18 else 1024
        return ["ds_read_b64_tr_b16 %s, v%d offset:%d" % (A(fb, 2), base, off), "ds_read_b64_tr_b16 %s, v%d offset:%d" % (A(fb+2, 2), base, off+dq)]
    avoid = {}
    for st in range(36):
        g = 24*st
        if st+1 < 36:
            G.add(g, "pre", WaitV("st%d" % (st+1))); G.add(g, "pre", "s_barrier")
        if st+5 < 36:
            for i in range(6):
                gg = g + 1 + 4*i
                a, b = dma(st+5, i)
                G.add(gg, "pre", a); G.add(gg, "vm", b); avoid[gg] = 1 if gg < 480 else 2
    for pr in range(2, 6):
        g = 2 + 48*(pr-2); G.add(g, "vm", t1(pr)); avoid[g] = 1
    if OPT["pf"] & 1:
        for t in range(6):
            g = OPT.get("pf0", 122) + OPT.get("pfd", 36)*t
            G.add(g, "pre", "s_movk_i32 s11, %d" % (t*18*128)); G.add(g, "vm", touch("buffer_load_dword v4, v31, %s, s11 offen" % S(SB))); avoid[g] = 1
    g2 = lambda sl: 432 + 48*sl
    flag = lambda n: [I("buffer_store_dword v7, v7, %s, 0 offen offset:%d sc1" % (S(SWS), 128*(n & 7)), "fl%d" % n)]
    def setst(sl): return "s_mov_b32 s%d, 0x%x" % (sST, (6+sl)*DS()) if sl < 3 else "s_mul_i32 s%d, s%d, %d" % (sST, sP+sl, DS())
    late = []
    for sl in range(8):
        g0 = g2(sl+1)
        G.add(g0+2, "pre", setst(sl))
        for f in range(4):
            gg = g0 + 6 + 4*f
            G.add(gg, "vm", pstore(PK+4*f, V8 + f//2, 1024*(f & 1)), "ps%d" % sl); avoid[gg] = 0
            late.append((cvts(ACC[sl & 1][f//2], f & 1, PK+4*f), gg-3, gg))
        if sl >= 2:
            gf = g0 + OPT.get("gf", 38)
            G.add(gf, "pre", WaitV("ps%d" % sl)); G.add(gf, "vm", flag(sl+1)); avoid[gf] = 1
    g8 = g2(8)
    G.add(g8+24, "pre", setst(8))
    for h in range(2):
        gg = g8 + 28 + 2*h
        G.add(gg, "vm", pstore(PK+4*h, V8, 1024*h), "ps8"); avoid[gg] = 0
        late.append((cvts(ACC[0][0], h, PK+4*h), gg-1, gg))
    pc = Poll("L_fc", "global_load_dword v%d, v%d, s[42:43] sc1" % (vFL, vFV), "v_cmp_gt_u32 vcc, 16, v%d" % vFL, "exec")
    G.add(g2(1)+20, "va", "v_mov_b32 v%d, s68" % vFV)
    pc.place(G, g2(1)+23, g2(2)+22); avoid[g2(1)+23] = 1
    polls = [Poll("L_fp%d" % b, "buffer_load_dword v%d, v%d, %s, 0 offen sc1" % (vFL, vPA, S(SWS)), "v_cmp_eq_u32 vcc, 0, v%d" % vFL, "s[%d:%d]" % (MK[b], MK[b]+1)) for b in range(5)]
    def srcloads(dl, dst):
        return ["s_lshl_b32 s11, s%d, 13" % (sP+7-dl)], [pload(dst+8*a+4*h, vL+a, 11, 1024*h) for a in range(2) for h in range(2)]
    PG = OPT.get("pg", 12); sums = []; SB_ = 2
    def free(g, n):
        o = []
        while len(o) < n:
            if g not in avoid: o.append(g)
            g += 1
        return o
    bufs = [LB, LB+16, LB, 16]
    NB = 4 if g2(8)+PG+28 < N else 3
    for b in range(NB):
        g0 = free(g2(5+b)+PG, 1)[0]
        polls[b].place(G, g0, g0+20); avoid[g0] = 1
        dst = bufs[b]
        pre, lds = srcloads(b, dst)
        gl = free(g0+22, 12 if b == SB_ else 4)
        G.add(gl[0], "pre", pre)
        for g_, x in zip(gl, lds): G.add(g_, "vm", x, "ld%d" % b); avoid[g_] = 2
        items = sum((psum(RS+8*h, dst+8*a+4*h, T, first=(b == 0 and a == 0)) for a in range(2) for h in range(2)), [])
        if b < 2: sums.append(("ld%d" % b, items, g0+46, g0+46+40))
        if b == SB_:
            for a2 in range(2):
                G.add(gl[4+4*a2], "pre", "s_mov_b32 s11, %d" % ((12+2*a2)*4096))
                for a in range(2):
                    for h in range(2):
                        g_ = gl[4+4*a2+2*a+h]; d_ = (LB+32 if a2 == 0 else SB2)+8*a+4*h
                        G.add(g_, "vm", pload(d_, vL+a, 11, 1024*h), "lds%d" % a2); avoid[g_] = 2
            if g0+46+24 <= N:
                sums.append(("ld2", items, g0+46, min(N, g0+46+38))); tail_bufs = [LB+32, SB2]
            else: tail_bufs = [LB, LB+32, SB2]
    if NB == 4: tail_bufs.append(16)
    else: G.add(N-8, "vm", polls[3].load())
    for tg, it, a, b in sums: G.add(a, "pre", WaitV(tg))
    gb = free(g2(1)+26, 5)
    for q in range(4):
        G.add(gb[q], "pre", "s_movk_i32 s11, %d" % (q*8*1152))
        G.add(gb[q], "vm", "buffer_load_dwordx2 %s, v%d, %s, s11 offen" % (V(XD+2*q, 2), vO+1, S(SX)), "xb"); avoid[gb[q]] = 2
    G.add(gb[4], "vm", "global_load_dwordx2 %s, v%d, s[32:33]" % (V(XD+8, 2), vO+2), "xb"); avoid[gb[4]] = 2
    G.add(g2(1)+22, "ds", "ds_write_b64 v%d, v[10:11]" % vTW); avoid[g2(1)+22] = 0
    for q in range(4): G.add(g2(1)+40+q, "ds", "ds_read_b64 %s, v%d offset:%d" % (V(XD+16+2*q, 2), vTR, 64*q))
    G.add(g2(2)+26, "pre", WaitV("xb"))
    pro, first, last = place_reads(G, N, rd, 7, avoid, 3, 4, NFB)
    for n in range(N): assert fr[n][0] == 0 or first[n] >= 24*(fr[n][0]-1), n
    for it, a, b in late: G.spread(it, a, b)
    K0 = 24
    G.spread(sum((center(j, T + 4*(j & 1)) for j in range(K0, 36)), []), 0, 68)
    G.add(362, "pre", ["s_xor_b32 s13, s27, 1", "s_lshl_b32 s12, s13, 6"])
    G.add(366, "pre", ["s_lshl_b32 s13, s13, 11", "s_lshl_b32 s14, s%d, 12" % sS, "s_add_u32 s14, s14, s13"])
    G.spread(["v_lshlrev_b32 v1, 9, v6"] + sum((["v_sub_u32 v%d, v%d, v1" % (RB2+k, RB+k), "v_xor_b32 v%d, s12, v%d" % (RB2+k, RB2+k)] for k in range(6)), [])
             + ["v_add_u32 v%d, s14, v8" % V8, "v_xor_b32 v%d, 0x800, v%d" % (V8+1, V8)], 368, 410)
    def silu(pr):
        o = []
        for u in range(2):
            k, b = hreg(2*pr+u); ac = ACC[pr & 1][u]
            for g4 in range(4):
                t = T + 4*(g4 & 1); z = ac+4*g4
                ex = ["v_exp_f32 v%d, v%d" % (t+q, z+q) for q in range(4)]
                ad = ["v_add_f32 v%d, 1.0, v%d" % (t+q, t+q) for q in range(4)]
                rc = ["v_rcp_f32 v%d, v%d" % (t+q, t+q) for q in range(4)]
                mu = ["v_mul_f32 v%d, v%d, v%d" % (t+q, z+q, t+q) for q in range(4)]
                if k == "v": cv = [["v_cvt_pk_bf16_f32 v%d, v%d, v%d" % (b+2*g4+q, t+2*q, t+2*q+1)] for q in range(2)]
                else: cv = [["v_cvt_pk_bf16_f32 v%d, v%d, v%d" % (t+2*q, t+2*q, t+2*q+1), "v_accvgpr_write_b32 a%d, v%d" % (b+2*g4+q, t+2*q)] for q in range(2)]
                o.append((ex, ad, rc, mu, cv))
        r = []
        for i in range(len(o)+1):
            cur = o[i] if i < len(o) else None; prv = o[i-1] if i else None
            tail = []
            if prv: tail = prv[3][:2] + prv[4][0][:1] + prv[3][2:] + prv[4][0][1:] + prv[4][1]
            if cur:
                ex, ad, rc = cur[0], cur[1], cur[2]
                seq = [ex[0], None, ex[1], ad[0], None, ex[2], ad[1], None, ex[3], ad[2], None, rc[0], ad[3], None, rc[1], None, rc[2], None, rc[3], None]
            else: seq = []
            for x in seq:
                if x is None:
                    if tail: r.append(tail.pop(0))
                else: r.append(x)
            r += tail
        return r
    for pr in range(5): G.spread(silu(pr), 72*(pr+1)+3, 72*(pr+2)-1)
    G.spread(silu(5), 432+3, 432+38)
    G.add(g2(0)+38, "pre", ["s_lshl_b32 s12, s%d, 8" % sW, "s_add_u32 s12, s12, 0x%x" % XA])
    G.add(g2(0)+39, "pre", ["s_lshl_b32 s13, s46, 5", "s_lshl_b32 s14, s%d, 6" % sS])
    G.spread(["v_mov_b32 v10, v9", "v_mov_b32 v11, v12", "v_and_b32 v1, 31, v5", "v_lshl_add_u32 v%d, v1, 3, s12" % vTW, "v_lshrrev_b32 v1, 3, v0", "v_lshl_add_u32 v%d, v1, 3, s12" % vTR,
              "v_and_b32 v2, 7, v0", "v_lshl_add_u32 v%d, v2, 3, s14" % (vO+2), "v_add_u32 v1, s13, v1", "v_mul_u32_u24 v1, 1152, v1", "v_add_u32 v%d, v1, v%d" % (vO+1, vO+2),
              "v_lshlrev_b32 v%d, 1, v%d" % (vO, vO+1)], g2(0)+40, g2(1)+20)
    G.add(g2(2)+0, "pre", ["s_mul_i32 s12, s%d, %d" % (sP+8, DS()), "s_lshl_b32 s13, s27, 11"])
    G.add(g2(2)+2, "pre", ["s_add_u32 s12, s12, s13", "s_mul_i32 s13, s46, %d" % (16*FS)])
    G.add(g2(2)+4, "pre", ["s_add_u32 s13, s13, 0x%x" % FLAGS, "s_add_u32 s14, s%d, 5" % (sP+8)])
    G.spread(["v_add_u32 v%d, s12, v8" % vL, "v_add_u32 v%d, 0x1000, v%d" % (vL+1, vL),
              "v_lshrrev_b32 v2, 1, v0", "v_sub_u32 v2, s14, v2", "v_add_u32 v3, -6, v2", "v_min_u32 v2, v2, v3",
              "v_add_u32 v1, 4, v2", "v_min_u32 v2, 4, v2", "v_mov_b32 v3, s14", "v_add_u32 v3, -4, v3", "v_cmp_gt_u32 vcc, 12, v0",
              "v_cndmask_b32 v1, v3, v1, vcc", "v_cndmask_b32 v2, %d, v2, vcc" % SB_, "v_cmp_gt_u32 vcc, 16, v0", "v_cndmask_b32 v2, 9, v2, vcc",
              "v_cmp_ne_u32 vcc, s%d, v0" % sS, "v_cndmask_b32 v2, 9, v2, vcc", "v_mul_u32_u24 v3, %d, v0" % FS, "v_and_b32 v1, 7, v1", "v_lshl_add_u32 v1, v1, 7, v3", "v_add_u32 v%d, s13, v1" % vPA]
             + ["v_cmp_eq_u32 s[%d:%d], %d, v2" % (MK[b], MK[b]+1, b) for b in range(5)], g2(2)+5, g2(2)+22)
    G.spread(unpack(XD+12, XD+9) + unpack(XD+10, XD+8) + sum((baseterm(BASE+2*q, XD+q, XD+10+2*(q & 1), XD+16+2*(q//2), T+2*(q & 1)) for q in range(8)), []), g2(2)+26, g2(4)+30)
    G.add(g2(4)+30, "pre", ["s_lshl_b32 s12, s%d, 12" % sW])
    G.spread(["v_and_b32 v1, 31, v5", "v_and_b32 v2, 7, v5", "v_xor_b32 v2, v2, v6", "v_lshlrev_b32 v2, 4, v2", "v_lshl_add_u32 v1, v1, 7, v2", "v_add_u32 v%d, s12, v1" % vTW,
              "v_lshrrev_b32 v1, 3, v0", "v_xor_b32 v2, v1, v0", "v_and_b32 v2, 7, v2", "v_lshlrev_b32 v2, 4, v2", "v_lshl_add_u32 v2, v1, 7, v2", "v_add_u32 v%d, s12, v2" % vTR]
             + ["v_xor_b32 v%d, %d, v%d" % (vO+a, 32*a, vTW) for a in (1, 2, 3)], g2(4)+31, g2(5)+4)
    for tg, it, a, b in sums: G.spread(it, a, b)
    for j in range(K0):
        p(center(j, T + 4*(j & 1), pk=True)); p(dmas(1 + j//6, j % 6, j % 6 + 1))
    p(WaitV("st0")); p("s_barrier"); p(pro); p(WaitL("f3"))
    gstamp(G, 0, 2); gstamp(G, 72, 3); gstamp(G, 432, 4)
    for sl in range(9): gstamp(G, g2(sl), 1+sl, 1)
    G.emit(p); stamp(p, 10, 1)
    report("ffn", G, 48)
    stamp(p, 5)
    p(WaitV("ps8")); p(flag(9))
    if NB == 3:
        polls[3].check(p); pre, lds = srcloads(3, 16); p(pre); p(lds, "ld3"); tail_bufs.append(16)
    p("s_mov_b32 s12, 0x3f80\ns_mov_b32 s13, 0x3f800000\ns_xor_b32 s14, s%d, 1\ns_lshl_b32 s14, s14, 12\nv_mov_b32 v1, 0x%x" % (sS, f2u(-1/LOG2E)))
    for r in range(16): p("v_add_f32 v%d, v%d, v%d" % (RS+r, RS+r, ACC[0][1]+r))
    for k, d_ in enumerate(tail_bufs):
        if k == OPT.get("tp", 2): p(polls[4].load())
        for a in range(2):
            for h in range(2): p(psum(RS+8*h, d_+8*a+4*h, T, dot=True))
    polls[4].check(p)
    stamp(p, 6)
    pre, lds = srcloads(4, LB); p(pre); p(lds, "ld4")
    p([pload(LB+16+4*h, vL, 14, 1024*h) for h in range(2)], "ld5")
    for a in range(3):
        for h in range(2): p(psum(RS+8*h, LB+8*a+4*h, T, dot=True))
    stamp(p, 7)
    for a in range(4): p("ds_write_b128 v%d, %s" % (vO+a if a else vTW, V(RS+4*a)))
    for i in range(4): p("ds_read_b128 %s, v%d offset:%d" % (V(LB+4*i), vTR, 1024*i))
    for i in range(4):
        for r in range(4): p("v_fma_f32 v%d, v%d, v1, v%d" % (LB+4*i+r, LB+4*i+r, BASE+4*i+r))
        p("s_mov_b32 s11, %d\nbuffer_store_dwordx4 %s, v%d, %s, s11 offen%s" % (i*8*2304, V(LB+4*i), vO, S(SC), OPT["outflav"]))
    stamp(p, 8)
    stamp_flush(p, 9, 0)
    p("s_endpgm")
    for x in [pc] + polls: p(Reset()); p(x.spin())

def cmul(d, a, b, t):
    return ["v_pk_mul_f32 %s, %s, %s op_sel:[1,1] op_sel_hi:[0,1] neg_lo:[1,0]" % (V(t, 2), V(a, 2), V(b, 2)),
            "v_pk_fma_f32 %s, %s, %s, %s op_sel_hi:[1,0,1]" % (V(d, 2), V(a, 2), V(b, 2), V(t, 2))]
def cfma(d, a, h, u):
    return ["v_pk_fma_f32 %s, %s, %s, %s op_sel_hi:[1,0,1]" % (V(d, 2), V(h, 2), V(a, 2), V(u, 2)),
            "v_pk_fma_f32 %s, %s, %s, %s op_sel:[1,1,0] op_sel_hi:[0,1,1] neg_lo:[1,0,0]" % (V(d, 2), V(h, 2), V(a, 2), V(d, 2))]
def ssm(p):
    DV, DV2, RB, TS, T, PR, E, U = 13, 22, 32, 44, 52, 64, 84, 96
    PAR = XA; EX = XA + 4096
    FB = 144; NFB = 18; AH = 3
    XP = [2, 5, 8, 0, 3, 6, 1, 4, 7] if OPT["rot"] else list(range(9))
    p("L_ssm:")
    xso = lambda c: ["s_movk_i32 s%d, %d" % (sOFF, 128*XP[c])]
    for c in range(AH): xissue(p, c, xso(c))
    srd(p, SWS, 44, 0x10000000)
    p("buffer_store_dwordx4 v[10:13], v44, %s, 0 offen sc1" % S(SWS), tag="clr")
    p("s_cmp_ge_u32 s%d, 2\ns_cselect_b32 s%d, s24, s22\ns_cselect_b32 s%d, s25, s23\ns_cselect_b32 s%d, s28, s26\ns_cselect_b32 s%d, s29, s27" % (sW, SA, SA+1, SB, SB+1))
    p("s_mov_b32 s%d, %d\ns_mov_b32 s%d, 0x20000\ns_mov_b32 s%d, %d\ns_mov_b32 s%d, 0x20000" % (SA+2, 576*1152, SA+3, SB+2, 576*1152, SB+3))
    p("s_lshl_b32 s34, s%d, 7\ns_lshl_b32 s35, s%d, 4\ns_add_u32 s35, s35, 512" % (sG, sG))
    p("s_lshl_b32 s14, s%d, 6\nv_add_u32 v1, s14, v0\nv_min_u32 v1, 143, v1\nv_lshlrev_b32 v%d, 3, v1" % (sW, TS+6))
    p("s_sub_u32 s13, s35, 128\ns_cmp_ge_u32 s%d, 2\ns_cselect_b32 s13, s13, s34\nv_add_u32 v1, s13, v1\nv_lshlrev_b32 v1, 1, v1" % sW)
    p("global_load_ushort v%d, v1, s[18:19]\nglobal_load_ushort v%d, v1, s[20:21]\nglobal_load_ushort v%d, v1, s[30:31]" % (T, T+1, T+2), tag="par")
    p("s_lshl_b32 s14, s%d, 15\ns_add_u32 s14, s14, 0x%x\ns_add_u32 s%d, s44, s14\ns_addc_u32 s%d, s45, 0\ns_mov_b32 s%d, 32768\ns_mov_b32 s%d, 0x20000" % (sG, CARRY, SC, SC+1, SC+2, SC+3))
    p("s_lshl_b32 s36, s%d, 11\nv_mov_b32 v2, -1\nv_mov_b32 v3, -1\nbuffer_store_dwordx2 v[2:3], v%d, %s, s36 offen sc1" % (sM, TS+6, S(SC)), tag="clr")
    p("v_lshrrev_b32 v1, 3, v0\nv_mul_u32_u24 v1, 1152, v1\nv_and_b32 v2, 7, v0\nv_lshrrev_b32 v3, 4, v0\nv_xor_b32 v2, v2, v3")
    p("s_and_b32 s37, s%d, 1\ns_lshl_b32 s14, s37, 2\nv_xor_b32 v2, s14, v2\nv_lshl_add_u32 v3, v2, 4, v1\nv_xor_b32 v2, 4, v2\nv_lshl_add_u32 v2, v2, 4, v1" % sW)
    p("s_mul_i32 s14, s%d, 72\ns_add_u32 s14, s14, s34\ns_cmp_ge_u32 s%d, 2\ns_cselect_b32 s13, 160, 0\ns_sub_i32 s14, s14, s13" % (sW, sW))
    p("s_cmp_eq_u32 s%d, 2\ns_cselect_b32 s12, s35, s14\ns_sub_u32 s13, s35, 56\ns_cmp_eq_u32 s%d, 1\ns_cselect_b32 s13, s13, s14" % (sW, sW))
    for i in range(9):
        p("s_add_i32 s11, s%d, %d\ns_mul_i32 s11, s11, 1152\nv_add_u32 v%d, s11, v%d" % (12 if i < 2 else (13 if i > 6 else 14), 8*i, DV+i, 2 if i & 1 else 3))
    p("s_mul_i32 s%d, s%d, 9216" % (sWB, sW))
    p("s_mul_i32 s14, s37, %d\ns_lshl_b32 s13, s34, 1\ns_add_u32 s13, s13, s14\ns_lshl_b32 s12, s35, 1\ns_add_u32 s12, s12, s14" % (32*1152))
    p("v_lshrrev_b32 v1, 4, v0\nv_and_b32 v2, 15, v0\nv_xor_b32 v2, v2, v1\nv_mul_u32_u24 v1, 1152, v1\nv_add_u32 v1, s13, v1")
    for i in range(4):
        p("v_xor_b32 v3, %d, v2\nv_lshl_add_u32 v3, v3, 4, v1\nv_add_u32 v%d, %d, v3\nv_add_u32 v%d, %d, v3" % (4*i, DV2+i, 4*i*1152, DV2+4+i, (16+4*i)*1152))
    p("v_lshrrev_b32 v1, 1, v0\nv_mul_u32_u24 v1, 1152, v1\nv_lshrrev_b32 v2, 4, v0\nv_xor_b32 v2, v2, v0\nv_and_b32 v2, 1, v2\nv_lshl_add_u32 v1, v2, 4, v1\nv_add_u32 v%d, s12, v1" % (DV2+8))
    p("s_and_b32 s13, s%d, 7\ns_lshl_b32 s13, s13, 1\ns_add_u32 s13, s13, s37\ns_mul_i32 s13, s13, 36\ns_lshl_b32 s14, s34, 1" % sM)
    p("v_min_u32 v1, 17, v0\nv_mul_u32_u24 v2, 86, v1\nv_lshrrev_b32 v2, 8, v2\nv_mul_u32_u24 v3, 3, v2\nv_sub_u32 v1, v1, v3\nv_add_u32 v2, s13, v2\nv_mul_u32_u24 v2, 1152, v2")
    p("v_cmp_eq_u32 vcc, 2, v1\nv_lshl_add_u32 v1, v1, 7, s14\nv_mov_b32 v3, 0x400\nv_cndmask_b32 v1, v1, v3, vcc\nv_add_u32 v31, v1, v2")
    p("s_lshr_b32 s13, s13, 2\nv_min_u32 v1, 26, v0\nv_mul_u32_u24 v2, 57, v1\nv_lshrrev_b32 v2, 9, v2\nv_mul_u32_u24 v3, 9, v2\nv_sub_u32 v1, v1, v3\nv_add_u32 v1, s13, v1")
    p("s_sub_u32 s14, s35, 128\nv_mov_b32 v3, s14\nv_mov_b32 v51, s34\nv_cmp_gt_u32 vcc, 128, v1\nv_cndmask_b32 v3, v3, v51, vcc\nv_add_u32 v1, v1, v3\nv_mul_u32_u24 v1, 1152, v1\nv_mul_u32_u24 v2, 384, v2\nv_add_u32 v51, v1, v2")
    tb = lambda k: [touch("buffer_load_dword v4, v51, %s, 0 offen offset:%d" % (S(SA), 128*k))] if OPT["pf"] & 2 else []
    p("s_lshl_b32 s68, s%d, 3\ns_lshl_b32 s38, s%d, 4\ns_add_u32 s38, s38, 128" % (sM, sG))
    def dma(st, i):
        pre = []
        if st < 9: so = XP[st]*128; dv, sr = DV, SA
        else: so = (st-9)*64*1152; dv, sr = DV2, SB
        if i == 0: pre.append("s_mov_b32 s%d, 0x%x" % (sOFF, so))
        pre.append("s_add_u32 m0, s%d, 0x%x" % (sWB, (st % 4)*36864 + i*1024))
        return pre, I("buffer_load_dwordx4 v%d, %s, s%d offen lds" % (dv+i, S(sr), sOFF), "st%d" % st)
    def dmas(st, i0, i1):
        o = []
        for i in range(i0, i1):
            a, b = dma(st, i); o += a + [b]
        return o
    stats(p, xso, dmas(0, 0, 9), 1.0, AH, {OPT.get('t0', 2): tb(2), OPT.get('t1', 6): tb(0)})
    announce(p, "L_ssm_an", [38, 68])
    for jj in range(4): p("v_mov_b32 v%d, v%d" % (RB+4+jj, RB+jj))
    lr, li, dt = T, T+1, T+2
    P0 = PR
    par = ("v_lshlrev_b32 v%d, 16, v%d\nv_lshlrev_b32 v%d, 16, v%d\nv_lshlrev_b32 v%d, 16, v%d\n" % (lr, lr, li, li, dt, dt) +
      "v_mul_f32 v%d, 0x%x, v%d\nv_exp_f32 v%d, v%d\nv_cvt_pk_bf16_f32 v%d, v%d, v%d\nv_and_b32 v%d, 0xffff0000, v%d\n" % (dt, f2u(LOG2E), dt, dt, dt, dt, dt, dt, dt, dt) +
      "v_mul_f32 v1, v%d, v%d\nv_mul_f32 v2, v%d, v%d\nv_mul_f32 v1, 0x%x, v1\nv_mul_f32 v2, 0.15915494, v2\nv_exp_f32 v1, v1\nv_fract_f32 v2, v2\n" % (dt, lr, dt, li, f2u(LOG2E)) +
      "v_cos_f32 v3, v2\nv_sin_f32 v2, v2\nv_mul_f32 v%d, v1, v3\nv_mul_f32 v%d, v1, v2\n" % (P0, P0+1) +
      "v_mul_f32 v1, v%d, v%d\nv_fmac_f32 v1, v%d, v%d\nv_rcp_f32 v1, v1\nv_add_f32 v2, -1.0, v%d\nv_mul_f32 v1, 0x%x, v1\n" % (lr, lr, li, li, P0, f2u(-2*LOG2E)) +
      "v_mul_f32 v3, v2, v%d\nv_fmac_f32 v3, v%d, v%d\nv_mul_f32 v%d, v%d, v%d\nv_fma_f32 v%d, -v2, v%d, v%d\n" % (lr, P0+1, li, dt, P0+1, lr, dt, li, dt) +
      "v_mul_f32 v%d, v3, v1\nv_mul_f32 v%d, v%d, v1\nv_mov_b32 v%d, v%d\nv_mov_b32 v%d, v%d\n" % (P0+2, P0+3, dt, TS+4, P0+2, TS+5, P0+3) +
      "v_lshlrev_b32 v3, 1, v%d\nv_add_u32 v3, 0x%x, v3" % (TS+6, PAR)).split("\n")
    def csq(d, a): return ["v_mul_f32 v1, v%d, v%d" % (a+1, a+1), "v_mul_f32 v2, v%d, v%d" % (a, a+1), "v_fma_f32 v%d, v%d, v%d, -v1" % (d, a, a), "v_add_f32 v%d, v2, v2" % (d+1)]
    par2 = csq(TS, P0) + csq(TS, TS) + csq(TS, TS) + csq(TS, TS) + csq(TS+2, TS) + csq(TS+2, TS+2) + csq(TS+2, TS+2)
    TO = [0, 5, 1, 6, 2, 7, 3, 8, 4]
    mf = []; fr = []
    for j, t in [(j, t) for j in range(32) for t in range(9)] + [(j, t) for t in TO for j in range(32, 36)]:
        n = len(mf); c = A(16*t, 16)
        mf.append("v_mfma_f32_32x32x16_bf16 %s, %s, %s, %s" % (c, V(XN+4*j), A(FB+4*(n % NFB)), c if j else "0")); fr.append((j, t))
    G = Gaps(mf)
    L = 10; PS = 3
    def rd(n):
        j, t = fr[n]
        base = RB + (j & 3) + (0 if j >= 32 else 4)
        return ["ds_read_b128 %s, v%d offset:%d" % (A(FB+4*(n % NFB)), base, t*4096)]
    gate = lambda n: 36*(n//36) - L + PS
    def ring(G, st0, nst, last):
        left = []
        for k in range(nst):
            st = st0+k; g = 36*(k+1) - L + PS
            if st+1 <= last:
                G.add(g, "pre", WaitL("f%d" % (36*k+35))); G.add(g, "pre", WaitV("st%d" % (st+1))); G.add(g, "pre", "s_barrier")
            if st+4 <= last:
                for i in range(9):
                    a, b = dma(st+4, i); gg = g+1+3*i
                    if gg < len(G.mf): G.add(gg, "pre", a); G.add(gg, "vm", b)
                    else: left += a + [b]
        return left
    for i in range(18):
        a, b = dma(2 + i//9, i % 9); gg = 1 + (3*i)//2; G.add(gg, "pre", a); G.add(gg, "vm", b)
    left = ring(G, 0, 9, 17)
    G.add(28, "vm", tb(1))
    if OPT["pf"] & 1:
        for t in range(6):
            g = 94 + 36*(t//2) + 3*(t & 1)
            G.add(g, "pre", "s_mov_b32 s11, %d" % (t*6*1152)); G.add(g, "vm", touch("buffer_load_dword v4, v31, %s, s11 offen" % S(SB)))
    pc0 = Poll("L_sc0", "global_load_dword v41, v40, s[42:43] sc1", "v_cmp_gt_u32 vcc, 16, v41", "exec")
    G.add(200, "va", ["v_mov_b32 v40, s38", "v_mov_b32 v41, s68", "v_cmp_gt_u32 vcc, 32, v0"]); G.add(201, "va", "v_cndmask_b32 v40, v40, v41, vcc")
    pc0.place(G, 206, 242)
    G.add(41, "ds", "ds_write_b128 v3, %s" % V(P0))
    G.add(268, "va", ["v_and_b32 v1, 31, v0", "v_lshlrev_b32 v2, 4, v1", "v_add_u32 v2, 0x%x, v2" % PAR])
    for k in range(5): G.add(270+k, "ds", "ds_read_b128 %s, v2 offset:%d" % (V(PR+4*k), 512*k))
    G.add(270, "pre", "s_lshl_b32 s14, s%d, 1" % sW)
    G.add(276, "va", ["v_add_u32 v3, s14, v6", "v_mul_u32_u24 v3, 1280, v3"]); G.add(277, "va", ["v_lshl_add_u32 v3, v1, 3, v3", "v_add_u32 v31, 0x%x, v3" % EX, "v_add_u32 v51, 0x%x, v%d" % (EX, TS+6)])
    pro, first, last = place_reads(G, 324, rd, L, {}, 2, 4, NFB, gate)
    for st in range(7):
        for jj in range(4):
            g = max(0, last[36*st+9*jj+8]) + 2; assert g < first[36*st+36+9*jj]
            G.add(g, "va", "v_add_u32 v%d, 0x%x, v%d" % (RB+4+jj, ((st+1) % 4)*36864, RB+jj))
    K0 = OPT.get("sk0", 5)
    G.spread(par, 0, 40); G.spread(par2, 42, 80)
    for j in range(K0, 36): G.spread(center(j, T + 4 + 4*(j & 1)), (j-K0)*282//(36-K0), (j-K0+1)*282//(36-K0))
    def ard(t):
        k, c = (t, 0) if t < 4 else ((t-5, 1) if t > 4 else (4, 0))
        o = ["v_accvgpr_read_b32 v%d, a%d" % (U+32*k+2*r+c, 16*t+r) for r in range(16)]
        if t == 4: o += ["v_accvgpr_read_b32 v%d, a%d" % (U+128+2*r+1, 64+r) for r in range(16)]
        return o
    for n in range(7): G.spread(ard(TO[n]), 288+4*n+6, min(324, 288+4*n+10))
    for j in range(K0):
        p(center(j, T+4+4*(j & 1), pk=True)); p(dmas(1, 2*j, min(9, 2*j+2)))
    p(WaitV("st0")); p("s_barrier"); p(pro); p(WaitL("f3"))
    gstamp(G, 0, 2)
    G.emit(p); report("ssm1", G, 36)
    p(ard(8)); p(left); p(ard(4))
    stamp(p, 3)
    for r in range(16): p("v_permlane16_swap_b32 v%d, v%d" % (U+128+2*r, U+128+2*r+1))
    for t in range(1, 16):
        seqs = []
        for k in range(5):
            d = (E if t & 1 else T) + 2*k
            h = U+32*k if t == 1 else (T if t & 1 else E) + 2*k
            seqs.append(cfma(d, PR+4*k, h, U+32*k+2*t))
        for q in range(2):
            for s_ in seqs: p(s_[q])
    for k in range(5): p("ds_write_b64 v31, %s offset:%d" % (V(E+2*k, 2), 256*k))
    p("s_waitcnt lgkmcnt(0)\ns_barrier")
    es = [T, T+2, T+4, T+6, T+8, T+10, E, E+2]
    p("s_cmp_eq_u32 s%d, 3\ns_cbranch_scc1 L_ssm_s1" % sW)
    for g in range(8): p("ds_read_b64 %s, v51 offset:%d" % (V(es[g], 2), 1280*g))
    cur = es[0]
    for g in range(1, 8):
        d = E+4 + 2*(g & 1); p(cfma(d, TS, cur, es[g])); cur = d
    p("v_min_u32 v%d, -2, v%d\nv_min_u32 v%d, -2, v%d" % (cur, cur, cur+1, cur+1))
    p("buffer_store_dwordx2 %s, v%d, %s, s36 offen sc1" % (V(cur, 2), TS+6, S(SC)))
    p("L_ssm_s1:")
    stamp(p, 4)
    def coef(k, tmp):
        for t in range(0, 16, len(tmp)):
            sq = [cmul(U+32*k+2*(t+q), U+32*k+2*(t+q), PR+4*k+2, tmp[q]) for q in range(len(tmp))]
            for q in range(2): p([x[q] for x in sq])
    coef(0, [14, 16, 18, 20]); coef(1, [14, 16, 18, 20]); coef(2, [14, 16, 18, 20])
    cr = [14, 16, 18, 20, 32, 34, 36, 38, 40, 42, 10, 2, PR+2, PR+6, PR+10]
    def cload():
        p("v_add_u32 v1, s14, v%d" % (TS+6))
        for t in range(15): p("buffer_load_dwordx2 %s, v1, %s, 0 offen sc1\nv_add_u32 v1, 2048, v1" % (V(cr[t], 2), S(SC)))
    p("s_sub_u32 s14, s36, %d\ns_cmp_eq_u32 s%d, 3\ns_cbranch_scc1 L_ssm_s1b" % (15*2048, sW))
    cload()
    p("L_ssm_s1b:")
    coef(3, [E+4, E+6, E+8, E+10]); coef(4, [E+4, E+6, E+8, E+10])
    p("s_cmp_eq_u32 s%d, 3\ns_cbranch_scc1 L_ssm_s2\ns_branch L_ssm_p2\nL_ssm_p1:" % sW)
    p(Reset()); cload()
    p("L_ssm_p2:\ns_waitcnt vmcnt(0)\nv_max_u32 v1, v%d, v%d" % (cr[0], cr[0]+1))
    for t in range(1, 15): p("v_max3_u32 v1, v1, v%d, v%d" % (cr[t], cr[t]+1))
    p("v_cmp_eq_u32 vcc, -1, v1\ns_add_u32 s69, s69, 1\ns_cmp_lt_u32 s69, 0x40000\ns_cselect_b64 s[12:13], -1, 0\ns_and_b64 vcc, vcc, s[12:13]\ns_cbranch_scc1 L_ssm_p1")
    cur = cr[0]
    for t in range(1, 15):
        d = E+4 + 2*(t & 1); p(cfma(d, TS+2, cur, cr[t])); cur = d
    for g in range(8):
        nx = []
        if g < 7:
            d = E+4 + (2 if cur == E+4 else 0); nx = cfma(d, TS, cur, es[g])
        cm = cmul(14+2*(g & 1), cur, TS+4, 18)
        p([x for pair in zip(nx, cm) for x in pair] if nx else cm)
        p("ds_write_b64 v51, %s offset:%d" % (V(14+2*(g & 1), 2), 1280*g))
        cur = d
    p("L_ssm_s2:\ns_waitcnt vmcnt(0) lgkmcnt(0)\ns_barrier")
    stamp(p, 5)
    for k in range(5): p("ds_read_b64 %s, v31 offset:%d" % (V(E+2*k, 2), 256*k))
    p("s_lshl_b32 s14, s%d, 12\ns_add_u32 s14, s14, 0x%x" % (sW, XA))
    p("v_and_b32 v1, 31, v0\nv_bfe_u32 v2, v0, 1, 2\nv_lshlrev_b32 v3, 1, v6\nv_xor_b32 v2, v2, v3\nv_lshlrev_b32 v1, 6, v1\nv_lshl_add_u32 v1, v2, 4, v1\nv_add_u32 v14, s14, v1\nv_xor_b32 v15, 16, v14")
    p("v_bfe_u32 v1, v0, 2, 2\nv_lshl_add_u32 v1, v6, 3, v1\nv_lshlrev_b32 v1, 6, v1\nv_and_b32 v2, 1, v0\nv_lshlrev_b32 v2, 1, v2\nv_bfe_u32 v3, v0, 4, 1\nv_add_u32 v2, v2, v3")
    p("v_bfe_u32 v3, v0, 3, 1\nv_xor_b32 v2, v2, v3\nv_lshl_add_u32 v1, v2, 4, v1\nv_bfe_u32 v3, v0, 1, 1\nv_lshl_add_u32 v1, v3, 3, v1\nv_add_u32 v16, s14, v1\nv_xor_b32 v17, 32, v16\nv_add_u32 v17, 256, v17")
    p("s_waitcnt lgkmcnt(0)\ns_barrier")
    HS = 0
    for t in range(16):
        sq = [cfma(U+32*k+2*t, PR+4*k, E+2*k if t == 0 else U+32*k+2*t-2, U+32*k+2*t) for k in range(5)]
        for q in range(2): p([x[q] for x in sq])
    RC = 40
    rcs = ["v_and_b32 v1, 31, v0", "v_and_b32 v2, 15, v0", "v_xor_b32 v2, v2, v6", "v_lshlrev_b32 v3, 8, v1", "v_add_u32 v3, 0x%x, v3" % 36864]
    for j in range(8): rcs += ["v_xor_b32 v%d, %d, v2" % (RC+j, 2*j), "v_lshl_add_u32 v%d, v%d, 4, v3" % (RC+j, RC+j)]
    rcs += ["v_bfe_u32 v2, v0, 3, 1", "v_xor_b32 v2, v2, v6", "v_lshlrev_b32 v2, 4, v2", "v_lshl_add_u32 v2, v1, 5, v2", "v_add_u32 v%d, 0x%x, v2" % (RC+8, 36864+8192)]
    for k in range(5):
        b = U+32*k; c = T if k & 1 else 32
        for hh in range(2):
            for q in range(4*hh, 4*hh+4): p("v_cvt_pk_bf16_f32 v%d, -v%d, -v%d" % (c+q, b+4*q+1, b+4*q+3))
            p("ds_write_b128 v%d, %s offset:2048" % (14+hh, V(c+4*hh)))
        for hh in range(2):
            for q in range(4*hh, 4*hh+4): p("v_cvt_pk_bf16_f32 v%d, v%d, v%d" % (b+q, b+4*q, b+4*q+2))
            p("ds_write_b128 v%d, %s" % (14+hh, V(b+4*hh)))
        for comp in range(2):
            for jl in range(2 if k < 4 else 1):
                h = HS + comp*36 + 4*(2*k+jl)
                p("ds_read_b64_tr_b16 %s, v16 offset:%d\nds_read_b64_tr_b16 %s, v17 offset:%d" % (A(h, 2), comp*2048+jl*1024, A(h+2, 2), comp*2048+jl*1024))
        if k == 0: p(rcs)
    ACC = [[96, 112], [128, 144]]; PK = 64; RS = 160; LB = 208; LB2 = None; BASE = 184
    V8 = 13; vPA, vFL, vL = 14, 15, 17
    XD = LB
    mf = []
    for dp in range(9):
        for kk in range(18):
            for u in range(2):
                n = len(mf); c = V(ACC[dp & 1][u], 16)
                mf.append("v_mfma_f32_32x32x16_bf16 %s, %s, %s, %s" % (c, A(FB+4*(n % NFB)), A(HS+4*kk), c if kk else "0"))
    G = Gaps(mf)
    def rd2(n):
        dp, r = divmod(n, 36); kk, u = divmod(r, 2); comp, j = divmod(kk, 9)
        return ["ds_read_b128 %s, v%d offset:%d" % (A(FB+4*(n % NFB)), RC+j, comp*18432+u*9216)]
    avoid = {}; late = []
    assert not ring(G, 9, 9, 17)
    flag = lambda n: [I("buffer_store_dword v7, v7, %s, 0 offen offset:%d sc1" % (S(SWS), 128*(n & 7)), "fl%d" % n)]
    for dp in range(1, 9):
        g = 36*dp
        G.add(g+2, "pre", "s_mov_b32 s%d, 0x%x" % (sST, (dp-1)*DS()))
        for f in range(4):
            gg = g+7+3*f
            G.add(gg, "vm", pstore(PK+4*f, V8, 1024*f), "ps%d" % (dp-1)); avoid[gg] = 0
            late.append((cvts(ACC[(dp-1) & 1][f//2], f & 1, PK+4*f), gg-2, gg))
        if dp <= 6:
            gf = g+37
            G.add(gf, "pre", WaitV("ps%d" % (dp-1))); G.add(gf, "vm", flag(dp))
    G.add(0, "pre", ["s_lshl_b32 s12, s%d, 12" % sS, "s_mul_i32 s13, s46, %d" % (16*FS), "s_add_u32 s13, s13, 0x%x" % FLAGS])
    G.add(1, "pre", ["s_mul_i32 s39, s%d, 96" % sG, "s_add_u32 s39, s39, 768", "s_mul_i32 s14, s%d, 3" % sG])
    su = ["v_add_u32 v%d, s12, v8" % V8, "v_cmp_gt_u32 vcc, 12, v0", "v_mul_u32_u24 v1, %d, v0" % FS, "v_mov_b32 v3, 3", "v_cndmask_b32 v2, 7, v3, vcc", "v_lshl_add_u32 v1, v2, 7, v1", "v_add_u32 v%d, s13, v1" % vPA]
    for i in range(3):
        su += ["v_mov_b32 v1, s14", "v_add_u32 v1, %d, v1" % (24+i), "v_lshrrev_b32 v2, 2, v1", "v_mul_u32_u24 v2, %d, v2" % DS(), "v_and_b32 v1, 3, v1", "v_lshl_add_u32 v1, v1, 10, v2", "v_add_u32 v%d, v1, v8" % (vL+i)]
    G.add(4, "pre", ["s_mov_b64 s[94:95], 0xfff", "s_mov_b64 s[96:97], 0xf000"])
    pa = Poll("L_sa", "buffer_load_dword v%d, v%d, %s, 0 offen sc1" % (vFL, vPA, S(SWS)), "v_cmp_eq_u32 vcc, 0, v%d" % vFL, "s[94:95]")
    pb = Poll("L_sb", "buffer_load_dword v%d, v%d, %s, 0 offen sc1" % (vFL, vPA, S(SWS)), "v_cmp_eq_u32 vcc, 0, v%d" % vFL, "s[96:97]")
    pa.place(G, 272, 296)
    def sload(s_): return ["s_mov_b32 s11, %d" % (s_*4096)], [I(pload(sbuf(s_)+4*i, vL+i, 11, 0), "ld%d" % s_) for i in range(3)]
    sbuf = lambda s_: [LB, LB+12, LB+24, LB+36, 128, 140, 20, 32][s_ % 8]
    for s_ in range(4):
        a, b = sload(s_); g = 306 + 4*s_
        G.add(g, "pre", a)
        for i in range(3): G.add(g+i, "vm", b[i])
    vTW, vTR, vO, vS = 80, 81, 84, 87
    G.add(20, "pre", ["s_mul_i32 s12, s%d, 6656" % sW, "s_add_u32 s12, s12, %d" % (2*36864)])
    G.add(21, "pre", ["s_lshl_b32 s13, s46, 5", "s_lshl_b32 s14, s%d, 12" % sW, "s_add_u32 s14, s14, 0x%x" % XA])
    tr = ["v_mov_b32 v10, v9", "v_mov_b32 v11, v12", "v_and_b32 v1, 31, v5", "v_lshl_add_u32 v16, v1, 3, s14", "v_mul_u32_u24 v1, 208, v1", "v_lshl_add_u32 v1, v6, 4, v1", "v_add_u32 v%d, s12, v1" % vTW]
    for i in range(3):
        tr += ["v_add_u32 v1, %d, v0" % (64*i), "v_mul_u32_u24 v2, 171, v1", "v_lshrrev_b32 v2, 11, v2", "v_mul_u32_u24 v3, 12, v2", "v_sub_u32 v1, v1, v3",
               "v_lshl_add_u32 v%d, v2, 3, s14" % (vS+i), "v_lshl_add_u32 v%d, v1, 3, s39" % (93+i), "v_lshlrev_b32 v1, 4, v1",
               "v_mul_u32_u24 v3, 208, v2", "v_add3_u32 v%d, v3, v1, s12" % (vTR+i), "v_add_u32 v2, s13, v2", "v_mul_u32_u24 v2, 1152, v2", "v_add_u32 v%d, v2, v%d" % (90+i, 93+i),
               "v_lshlrev_b32 v%d, 1, v%d" % (vO+i, 90+i)]
    assert all((n*171) >> 11 == n//12 for n in range(192))
    G.add(56, "ds", "ds_write_b64 v16, v[10:11]"); avoid[56] = 0
    G.add(57, "pre", "s_movk_i32 s11, %d" % (16*1152))
    for q in range(6):
        G.add(57+q, "vm", "buffer_load_dwordx2 %s, v%d, %s, %s offen" % (V(XD+2*q, 2), 90 + q % 3, S(SX), "s11" if q >= 3 else "0"), "xb")
        G.add(58+q, "ds", "ds_read_b64 %s, v%d offset:%d" % (V(XD+12+2*q, 2), vS + q % 3, 128*(q//3)))
    for q in range(3): G.add(92+q, "vm", "global_load_dwordx2 %s, v%d, s[32:33]" % (V(XD+24+2*q, 2), 93+q), "xb")
    G.add(128, "pre", WaitV("xb"))
    pro, first, last = place_reads(G, 324, rd2, L, avoid, 2, 4, NFB, gate)
    for dp in range(8):
        for j in range(9):
            g = last[36*dp+19+2*j] + 1
            if not avoid.get(g, 1): g += 1
            assert g < first[36*dp+36+2*j]
            G.add(g, "va", "v_add_u32 v%d, 0x%x, v%d" % (RC+j, (36864 if (dp+10) % 4 else -3*36864) & 0xffffffff, RC+j))
    for it, a, b in late: G.spread(it, a, b)
    G.spread(su, 2, 19); G.spread(tr, 22, 55)
    G.spread(sum((unpack(XD+30+2*q, XD+24+q) for q in range(6)), []) +
             sum((baseterm(BASE+2*q, XD+q, XD+30+4*((q//2) % 3)+2*(q & 1), XD+12+2*(q//2), T+2*(q & 1)) for q in range(12)), []), 128, 290)
    G.spread(["v_mov_b32 v%d, 0" % (RS+r) for r in range(24)], 290, 322)
    p("s_waitcnt lgkmcnt(0)")
    stamp(p, 6)
    p(pro); p(WaitL("f3"))
    for sl in range(9): gstamp(G, 36*sl, 1+sl, 1)
    G.emit(p); report("ssm2", G, 36); stamp(p, 10, 1)
    stamp(p, 7)
    p("s_mov_b32 s%d, 0x%x" % (sST, 8*DS()))
    for f in range(4): p(cvts(ACC[0][f//2], f & 1, PK+4*f)); p(pstore(PK+4*f, V8, 1024*f), "ps8")
    for s_ in range(4, 8): p(sload(s_))
    srd(p, SC, 40, 2048*2304)
    p("s_mov_b32 s12, 0x3f80\ns_mov_b32 s13, 0x3f800000\nv_mov_b32 v1, 0x%x" % f2u(-1/LOG2E))
    def ssum(s_):
        for i in range(3): p(psum(RS+8*i, sbuf(s_)+4*i, T, dot=True))
    for s_ in range(4): ssum(s_)
    p(WaitV("ps8")); p(flag(7))
    for s_ in range(8, 12): p(sload(s_))
    for s_ in range(4, 8): ssum(s_)
    p(pb.load()); ssum(8); ssum(9); pb.check(p)
    stamp(p, 8)
    for s_ in range(12, 16): p(sload(s_))
    for s_ in range(10, 16): ssum(s_)
    for a in range(6): p("ds_write_b128 v%d, %s offset:%d" % (vTW, V(RS+4*a), 32*a))
    for i in range(6): p("ds_read_b128 %s, v%d offset:%d" % (V(LB+4*i), vTR + i % 3, (i//3)*16*208))
    p("s_mov_b32 s11, %d" % (16*2304))
    for i in range(6):
        for r in range(4): p("v_fma_f32 v%d, v%d, v1, v%d" % (LB+4*i+r, LB+4*i+r, BASE+4*i+r))
        p("buffer_store_dwordx4 %s, v%d, %s, %s offen%s" % (V(LB+4*i), vO + i % 3, S(SC), "s11" if i >= 3 else "0", OPT["outflav"]))
    stamp(p, 9)
    stamp_flush(p, 10, 1)
    p("s_endpgm")
    for x in (pc0, pa, pb): p(Reset()); p(x.spin())

def main_kernel():
    p = Prog(); entry(p); ffn(p); t1 = p.finish()
    if OPT.get("verbose"): print("ffn", p.stats, file=sys.stderr)
    q = Prog(); entry(q); ssm(q); t2 = q.finish()
    if OPT.get("verbose"): print("ssm", q.stats, file=sys.stderr)
    return t1 + t2[t2.index("L_ssm:"):] + "L_code_end:\n    s_endpgm\n"

def build():
    K1 = NAME + "_kernel"
    ex = "  .amdhsa_float_denorm_mode_32 3\n"
    s = "; @launch grid=(256,1,1) block=(256,1,1) lds=163840\n"
    s += ".amdgcn_target \"amdgcn-amd-amdhsa--gfx950\"\n.text\n" + head(K1) + main_kernel()
    s += ".section .rodata,\"a\"\n.p2align 6\n" + kd(K1, 512, 256, 102, ex)
    return s
if __name__ == "__main__":
    out = sys.argv[1]
    for a in sys.argv[2:]:
        k, v = a.split("="); OPT[k] = int(v) if v.lstrip("-").isdigit() else (" " + v if v else "")
    open(out, "w").write(build())
```

```python
import sys, struct
from fw import *
from asmlib import NAME, kd, head
def f2u(x): return struct.unpack("<I", struct.pack("<f", x))[0]
LOG2E = 1.4426950408889634
CARRY = 0x2800000; FLAGS = 0x2900000; STAMP = 0x8000000
OPT = dict(stamp=0, pf=3, rot=1, outflav="")
sW, sM, sQ, sG, sS = 3, 4, 5, 6, 7
SX, SA, SB, SWS, SC = 48, 52, 56, 60, 64
sWB, sOFF, sST = 8, 9, 10
XN = 112
XA = 147456
FS = 1280
def DS(): return OPT.get('ds', 69632)
def srd(p, d, ptr, size):
    p("s_mov_b32 s%d, s%d\ns_mov_b32 s%d, s%d\ns_mov_b32 s%d, 0x%x\ns_mov_b32 s%d, 0x20000" % (d, ptr, d+1, ptr+1, d+2, size, d+3))
def S(d): return "s[%d:%d]" % (d, d+3)
def V(a, n=4): return "v[%d:%d]" % (a, a+n-1)
def A(a, n=4): return "a[%d:%d]" % (a, a+n-1)
def TM(): return "s_memtime" if OPT["stamp"] == 2 else "s_memrealtime"
def stx(i): return "%s s[%d:%d]" % (TM(), 70+2*i, 71+2*i)
def stamp(p, i, mode=0):
    if OPT["stamp"] and (OPT.get("smode", 0) == mode or i == 0): p(stx(i))
def gstamp(G, g, i, mode=0):
    if OPT["stamp"] and OPT.get("smode", 0) == mode: G.add(g, "pre", stx(i))
def stamp_flush(p, last, path):
    if not OPT["stamp"]: return
    p("s_waitcnt vmcnt(0)"); stamp(p, last); stamp(p, 11, 1); p("s_waitcnt lgkmcnt(0)")
    if "leak" in OPT:
        i = OPT["leak"] if OPT.get("lpath", 0) == path else 0
        if OPT["leak"] == 20:
            i = 0
            p("s_not_b32 s12, s70\nv_mov_b32 v2, s12\nv_mov_b32 v1, 240\ns_mov_b64 exec, 1"); p(untracked("global_atomic_umax v1, v2, s[42:43]"))
            p("s_add_u32 s12, s70, 5000\nL_lj%d:\ns_sleep 4\ns_memrealtime s[14:15]\ns_waitcnt lgkmcnt(0)\ns_sub_u32 s14, s14, s12\ns_cmp_lt_i32 s14, 0\ns_cbranch_scc1 L_lj%d" % (path, path))
            p("global_load_dword v2, v1, s[42:43] sc1\ns_waitcnt vmcnt(0)\nv_readfirstlane_b32 s12, v2\ns_not_b32 s70, s12\ns_add_u32 s70, s70, 1000")
        p("s_add_u32 s12, s%d, 6000\nL_lk%d:\ns_sleep 4\ns_memrealtime s[14:15]\ns_waitcnt lgkmcnt(0)\ns_sub_u32 s14, s14, s12\ns_cmp_lt_i32 s14, 0\ns_cbranch_scc1 L_lk%d" % (70+2*i, path, path))
        return
    p("s_lshl_b32 s11, s2, 2\ns_add_u32 s11, s11, s%d\ns_lshl_b32 s11, s11, 7\ns_add_u32 s11, s11, 0x%x\nv_mov_b32 v1, 0" % (sW, STAMP))
    for i in range(12):
        p("v_mov_b32 v2, s%d\nv_mov_b32 v3, s%d\nbuffer_store_dwordx2 v[2:3], v1, %s, s11 offen offset:%d" % (70+2*i, 71+2*i, S(SWS), 8*i))
    p("v_mov_b32 v2, s69\nv_mov_b32 v3, 0\nbuffer_store_dwordx2 v[2:3], v1, %s, s11 offen offset:96" % S(SWS))
def touch(text):
    x = I(text, "pf"); x.W = set(); return x
def untracked(text):
    x = I("s_nop 0"); x.text = text; x.k = "sctl"; return x

def entry(p):
    p("s_cmp_ge_u32 s2, 256\ns_cbranch_scc0 L_go\ns_endpgm\nL_go:")
    stamp(p, 0)
    p("s_load_dwordx16 s[16:31], s[0:1], 0\ns_load_dwordx8 s[32:39], s[0:1], 64\ns_load_dwordx4 s[40:43], s[0:1], 96\ns_load_dwordx2 s[44:45], s[0:1], 112")
    p("s_getpc_b64 s[12:13]\nL_pc:")
    p("v_lshrrev_b32 v1, 6, v0\nv_and_b32 v0, 63, v0\nv_readfirstlane_b32 s%d, v1" % sW)
    p("s_lshr_b32 s11, s2, 3\ns_and_b32 s%d, s11, 3\ns_bfe_u32 s%d, s2, 0x20001" % (sQ, sG))
    p("s_and_b32 s14, s2, 1\ns_lshl_b32 s14, s14, 3\ns_lshr_b32 s%d, s11, 2\ns_add_u32 s%d, s%d, s14" % (sM, sM, sM))
    p("s_lshl_b32 s14, s11, 2\ns_add_u32 s14, s14, s%d\ns_mul_i32 s14, s14, 5" % sW)
    p("v_min_u32 v1, 4, v0\nv_add_u32 v1, s14, v1\nv_lshlrev_b32 v1, 7, v1\nv_min_u32 v1, L_code_end-L_pc-4, v1")
    p("v_mov_b32 v3, s13\nv_add_co_u32 v2, vcc, s12, v1\nv_addc_co_u32 v3, vcc, 0, v3, vcc")
    p(touch("global_load_dword v4, v[2:3], off"))
    p("s_lshl_b32 s46, s%d, 2\ns_add_u32 s46, s46, s%d\ns_lshl_b32 s15, s46, 5\nv_lshrrev_b32 v6, 5, v0" % (sM, sW))
    p("v_bfe_u32 v1, v0, 3, 2\nv_lshl_add_u32 v1, v6, 4, v1\nv_add_u32 v1, s15, v1\nv_mul_u32_u24 v1, 1152, v1")
    p("v_and_b32 v2, 7, v0\nv_lshrrev_b32 v3, 4, v0\nv_xor_b32 v2, v2, v3\nv_lshl_add_u32 v40, v2, 4, v1\nv_xor_b32 v2, 4, v2\nv_lshl_add_u32 v41, v2, 4, v1")
    p("v_add_u32 v42, %d, v40\nv_add_u32 v43, %d, v41\nv_add_u32 v41, %d, v41" % (2*3584, 3*3584, 3584))
    p("s_mul_i32 s47, s%d, 36864" % sW)
    p("v_bfe_u32 v5, v0, 2, 1\nv_lshlrev_b32 v5, 4, v5\nv_bfe_u32 v1, v0, 3, 2\nv_lshl_add_u32 v5, v1, 2, v5\nv_and_b32 v1, 3, v0\nv_add3_u32 v5, v5, v1, s15")
    p("v_and_b32 v1, 31, v0\nv_bfe_u32 v2, v0, 1, 3\nv_xor_b32 v2, v2, v6\nv_lshlrev_b32 v3, 7, v1")
    for jj in range(4): p("v_xor_b32 v7, %d, v2\nv_lshl_add_u32 v%d, v7, 4, v3\nv_add_u32 v%d, s47, v%d" % (2*jj, 32+jj, 36+jj, 32+jj))
    p("s_mul_i32 s15, s46, %d\nv_lshlrev_b32 v8, 4, v0\nv_add_u32 v8, s15, v8" % (9*DS()))
    p("s_mul_i32 s%d, s%d, 3\ns_add_u32 s%d, s%d, s%d\ns_add_u32 s14, s%d, 12\ns_cmp_eq_u32 s%d, 3\ns_cselect_b32 s%d, s14, s%d" % (sS, sG, sS, sS, sQ, sG, sQ, sS, sS))
    p("s_lshl_b32 s14, s46, 4\ns_add_u32 s14, s14, s%d\ns_mul_i32 s14, s14, %d\ns_add_u32 s14, s14, 0x%x" % (sS, FS, FLAGS))
    p("v_min_u32 v7, 1, v0\nv_lshlrev_b32 v7, 30, v7\nv_add_u32 v7, s14, v7\ns_mov_b32 s69, 0\nv_lshl_add_u32 v44, v0, 4, s14\nv_mov_b32 v13, 0")
    p("v_mov_b32 v9, 0\nv_mov_b32 v10, 0\nv_mov_b32 v11, 0\nv_mov_b32 v12, 0")
    p("s_waitcnt lgkmcnt(0)")
    srd(p, SX, 16, 2048*1152)
    p("s_cmp_eq_u32 s%d, 3\ns_cbranch_scc1 L_ssm" % sQ)

def xissue(p, c, so):
    p("s_add_u32 m0, s47, %d" % (4096*c)); p(so)
    for i in range(4):
        p("buffer_load_dwordx4 v%d, %s, s%d offen offset:%d lds" % (40+i, S(SX), sOFF, 1024*i), tag="x%d" % c)

def stats(p, xso, after_bar, scale, AH, extra={}):
    p("s_mov_b32 s14, 0x3f803f80")
    def dots(c):
        for x in range(XN+16*c, XN+16*c+16):
            p("v_dot2c_f32_bf16 v%d, s14, v%d\nv_dot2c_f32_bf16 v%d, v%d, v%d" % (9+(x & 1), x, 11+(x & 1), x, x))
    for c in range(9):
        p(WaitV("x%d" % c))
        for jj in range(4): p("ds_read_b128 %s, v%d offset:%d" % (V(XN+16*c+4*jj), 36+jj, 4096*c), tag="xr%d" % c)
        if c+AH < 9: xissue(p, c+AH, xso(c+AH))
        p(extra.get(c, []))
        p(WaitL("xr%d" % c))
        if c < 8: dots(c)
    p("s_barrier")
    stamp(p, 1)
    p(after_bar)
    dots(8)
    p("v_add_f32 v9, v9, v10\nv_add_f32 v11, v11, v12\nv_mov_b32 v10, v9\nv_mov_b32 v12, v11")
    p("v_permlane32_swap_b32 v9, v10\nv_permlane32_swap_b32 v11, v12\nv_add_f32 v9, v9, v10\nv_add_f32 v11, v11, v12")
    p("v_mul_f32 v9, 0x%x, v9\nv_mul_f32 v11, 0x%x, v11" % (f2u(1/576.), f2u(1/576.)))
    p("v_fma_f32 v12, -v9, v9, v11\nv_max_f32 v12, 0, v12\nv_cvt_pk_bf16_f32 v10, v9, v12")
    p("v_lshlrev_b32 v9, 16, v10\nv_and_b32 v12, 0xffff0000, v10\nv_add_f32 v12, 0x%x, v12" % f2u(1e-5))
    p("v_cvt_pk_bf16_f32 v12, v12, v12\nv_and_b32 v12, 0xffff0000, v12\nv_sqrt_f32 v12, v12")
    p("v_cvt_pk_bf16_f32 v12, v12, v12\nv_and_b32 v12, 0xffff0000, v12\nv_rcp_f32 v12, v12")
    p("v_mul_f32 v10, 0x%x, v12" % f2u(scale))
    p("v_mul_f32 v11, v10, v9\nv_xor_b32 v11, 0x80000000, v11\ns_mov_b32 s15, 0xffff0000")
def center(j, t, pk=False):
    o = []
    for h in range(2):
        a, b = XN+4*j+2*h, XN+4*j+2*h+1
        o += ["v_lshlrev_b32 v%d, 16, v%d" % (t, a), "v_and_b32 v%d, s15, v%d" % (t+1, a), "v_lshlrev_b32 v%d, 16, v%d" % (t+2, b), "v_and_b32 v%d, s15, v%d" % (t+3, b)]
        if pk: o += ["v_pk_fma_f32 %s, %s, v[10:11], v[10:11] op_sel:[0,0,1] op_sel_hi:[1,0,1]" % (V(t+k, 2), V(t+k, 2)) for k in (0, 2)]
        else: o += ["v_fma_f32 v%d, v%d, v10, v11" % (t+k, t+k) for k in range(4)]
        o += ["v_cvt_pk_bf16_f32 v%d, v%d, v%d" % (a, t, t+1), "v_cvt_pk_bf16_f32 v%d, v%d, v%d" % (b, t+2, t+3)]
    return o
def announce(p, name, offs):
    p("s_cmp_lg_u32 s%d, 0\ns_cbranch_scc1 %s\ns_mov_b64 exec, 1\nv_mov_b32 v2, 1" % (sW, name))
    for o in offs:
        p("v_mov_b32 v1, s%d" % o); p(untracked("global_atomic_add v1, v2, s[42:43]"))
    p("s_mov_b64 exec, -1\n%s:" % name)

def cvts(acc, h, pk): return ["v_cvt_pk_bf16_f32 v%d, v%d, v%d" % (pk+q, acc+8*h+2*q, acc+8*h+2*q+1) for q in range(4)]
def pstore(pk, vo, off): return "buffer_store_dwordx4 %s, v%d, %s, s%d offen offset:%d sc1" % (V(pk), vo, S(SWS), sST, off)
def pload(dst, vo, so, off): return "buffer_load_dwordx4 %s, v%d, %s, s%d offen offset:%d sc1" % (V(dst), vo, S(SWS), so, off)
def psum(rs, src, t, first=False, dot=False):
    o = []
    if dot:
        for q in range(4): o += ["v_dot2c_f32_bf16 v%d, s12, v%d" % (rs+2*q, src+q), "v_dot2c_f32_bf16 v%d, s13, v%d" % (rs+2*q+1, src+q)]
        return o
    if first:
        for q in range(4): o += ["v_lshlrev_b32 v%d, 16, v%d" % (rs+2*q, src+q), "v_and_b32 v%d, s15, v%d" % (rs+2*q+1, src+q)]
        return o
    for q in range(0, 4, 2):
        o += ["v_lshlrev_b32 v%d, 16, v%d" % (t, src+q), "v_lshlrev_b32 v%d, 16, v%d" % (t+1, src+q+1),
              "v_and_b32 v%d, s15, v%d" % (src+q, src+q), "v_and_b32 v%d, s15, v%d" % (src+q+1, src+q+1),
              "v_add_f32 v%d, v%d, v%d" % (rs+2*q, rs+2*q, t), "v_add_f32 v%d, v%d, v%d" % (rs+2*q+2, rs+2*q+2, t+1),
              "v_add_f32 v%d, v%d, v%d" % (rs+2*q+1, rs+2*q+1, src+q), "v_add_f32 v%d, v%d, v%d" % (rs+2*q+3, rs+2*q+3, src+q+1)]
    return o
def baseterm(b, x, dl, mr, t):
    return ["v_lshlrev_b32 v%d, 16, v%d" % (b, x), "v_and_b32 v%d, s15, v%d" % (b+1, x), "v_sub_f32 v%d, v%d, v%d" % (t, b, mr), "v_sub_f32 v%d, v%d, v%d" % (t+1, b+1, mr),
            "v_cvt_pk_bf16_f32 v%d, v%d, v%d" % (t, t, t+1), "v_and_b32 v%d, s15, v%d" % (t+1, t), "v_lshlrev_b32 v%d, 16, v%d" % (t, t),
            "v_mul_f32 v%d, v%d, v%d" % (t+1, t+1, mr+1), "v_mul_f32 v%d, v%d, v%d" % (t, t, mr+1),
            "v_cvt_pk_bf16_f32 v%d, v%d, v%d" % (t, t, t+1), "v_and_b32 v%d, s15, v%d" % (t+1, t), "v_lshlrev_b32 v%d, 16, v%d" % (t, t),
            "v_mul_f32 v%d, v%d, v%d" % (t+1, t+1, dl+1), "v_mul_f32 v%d, v%d, v%d" % (t, t, dl),
            "v_cvt_pk_bf16_f32 v%d, v%d, v%d" % (t, t, t+1), "v_and_b32 v%d, s15, v%d" % (t+1, t), "v_lshlrev_b32 v%d, 16, v%d" % (t, t),
            "v_add_f32 v%d, v%d, v%d" % (b+1, b+1, t+1), "v_add_f32 v%d, v%d, v%d" % (b, b, t)]
def unpack(d, x): return ["v_lshlrev_b32 v%d, 16, v%d" % (d, x), "v_and_b32 v%d, s15, v%d" % (d+1, x)]
class Poll:
    def __init__(self, name, load, cmp, mask):
        self.name, self.ld, self.cmp, self.mask = name, load, cmp, mask
    def load(self):
        if self.mask == "exec": return [I(self.ld, self.name)]
        return [I("s_mov_b64 exec, %s" % self.mask), I(self.ld, self.name), I("s_mov_b64 exec, -1")]
    def chk(self): return ["s_and_b64 vcc, vcc, %s" % self.mask, "s_cbranch_scc1 %s_spin" % self.name, "%s_ret:" % self.name]
    def place(self, G, g_load, g_chk):
        G.add(g_load, "vm", self.load())
        G.add(g_chk, "pre", WaitV(self.name)); G.add(g_chk, "va", self.cmp); G.add(g_chk+1, "pre", self.chk())
    def check(self, p): p(WaitV(self.name)); p(self.cmp); p(self.chk())
    def spin(self):
        return (["%s_spin:" % self.name] + self.load() + ["s_add_u32 s69, s69, 1\ns_cmp_lt_u32 s69, 0x40000\ns_cselect_b64 s[100:101], %s, 0\ns_waitcnt vmcnt(0)\n%s\ns_and_b64 vcc, vcc, s[100:101]\n"
                "s_cbranch_scc1 %s_spin\ns_branch %s_ret" % (self.mask, self.cmp, self.name, self.name)])

def place_reads(G, nfr, rd, L, avoid, maxper, wgrp, nfb, gate=None):
    items = [(n, I(x, "f%d" % n)) for n in range(nfr) for x in rd(n)]
    pos = [None]*len(items); used = {}
    g = 10**9
    for k in range(len(items)-1, -1, -1):
        g = min(g, items[k][0] - L)
        while g >= 0 and used.get(g, 0) >= avoid.get(g, maxper): g -= 1
        pos[k] = max(g, -1); used[g] = used.get(g, 0) + 1
    if gate:
        used = {}; g = -1
        for k, (n, x) in enumerate(items):
            g = max(g, pos[k], gate(n) if gate(n) > 0 else -1)
            while g >= 0 and used.get(g, 0) >= avoid.get(g, maxper): g += 1
            pos[k] = g; used[g] = used.get(g, 0) + 1
    pro = []; first = {}; last = {}
    for k, (n, x) in enumerate(items):
        assert n - nfb < max(pos[k], -1) + 1 or pos[k] < 0 and n < nfb, (n, pos[k])
        assert pos[k] <= n - wgrp - 1 or pos[k] < 0, (n, pos[k])
        first.setdefault(n, pos[k]); last[n] = pos[k]
        if pos[k] < 0: pro.append(x)
        else: G.add(pos[k], "ds", x)
    for g in range(wgrp-1, nfr-1, wgrp):
        G.g[g]["pre"].append(WaitL("f%d" % min(g+wgrp, nfr-1)))
    return pro, first, last
def report(nm, G, step):
    if OPT.get("verbose"):
        ld = [G.load(g) for g in range(len(G.mf))]
        print(nm, " ".join("%.1f/%.0f" % (sum(ld[b:b+step])/step, max(ld[b:b+step])) for b in range(0, len(ld), step)), file=sys.stderr)

def ffn(p):
    DV, RB, DV2, T = 13, 19, 25, 32
    ACC = [[40, 56], [72, 88]]
    HV = 104; FB = 128; NFB = 18; HA = 0
    sP = 15
    sK = 24
    MK = [28, 30, 94, 96, 98]
    AH = 3
    rot = OPT["rot"]
    p("s_mul_i32 s68, s%d, %d" % (sQ, 384*rot))
    def xso(c):
        if c == 0: return ["s_mov_b32 s%d, s68" % sOFF]
        o = ["s_add_u32 s%d, s%d, 128" % (sOFF, sOFF)]
        if c % 3 == 0: o += ["s_cmp_eq_u32 s%d, 1152" % sOFF, "s_cselect_b32 s%d, 0, s%d" % (sOFF, sOFF)]
        return o
    for c in range(AH): xissue(p, c, xso(c))
    srd(p, SWS, 44, 0x10000000)
    p("buffer_store_dwordx4 v[10:13], v44, %s, 0 offen sc1" % S(SWS), tag="clr")
    srd(p, SA, 36, 576*9216); srd(p, SB, 38, 4608*1152); srd(p, SC, 40, 2048*2304)
    for c in range(3):
        p("s_add_u32 s14, s%d, %d\ns_cmp_ge_u32 s14, 3\ns_cselect_b32 s13, 3, 0\ns_sub_u32 s14, s14, s13\ns_mul_i32 s%d, s14, %d" % (sQ, c, sK+c, 192*9216) if rot else "s_mov_b32 s%d, %d" % (sK+c, c*192*9216))
    p("s_lshr_b32 s%d, s%d, 1" % (sP+8, sS))
    for sl in range(3, 8):
        p("s_add_u32 s14, s%d, %d\ns_cmp_ge_u32 s14, 6\ns_cselect_b32 s13, 6, 0\ns_sub_u32 s%d, s14, s13" % (sP+8, sl-2, sP+sl))
    p("v_lshrrev_b32 v1, 3, v0\nv_and_b32 v2, 7, v0\nv_lshlrev_b32 v3, 1, v1\nv_and_b32 v3, 4, v3\nv_xor_b32 v2, v2, v3\nv_lshlrev_b32 v2, 4, v2")
    p("s_mul_i32 s14, s%d, 48\nv_add_u32 v1, s14, v1\nv_mul_u32_u24 v3, 9216, v1\ns_mul_i32 s14, s%d, 768\nv_add3_u32 v%d, v3, v2, s14" % (sW, sS, DV))
    p("v_mul_u32_u24 v3, 1152, v1\ns_mul_i32 s14, s%d, %d\nv_add3_u32 v%d, v3, v2, s14" % (sS, 384*1152, DV2))
    for i in range(1, 6):
        p("v_add_u32 v%d, %d, v%d\nv_add_u32 v%d, %d, v%d" % (DV+i, i*8*9216 - (i % 3)*1024, DV, DV2+i, i*8*1152 - (i % 3)*1024, DV2))
    p("s_mul_i32 s%d, s%d, 6144" % (sWB, sW))
    p("s_and_b32 s13, s46, 31\ns_mul_i32 s13, s13, 108\ns_mul_i32 s14, s%d, 3456\ns_add_u32 s13, s13, s14\nv_min_u32 v1, 17, v0\nv_add_u32 v1, s13, v1\nv_lshlrev_b32 v31, 7, v1" % sS)
    p("s_and_b32 s13, s46, 31\ns_mul_i32 s13, s13, 18\nv_min_u32 v1, 17, v0\nv_add_u32 v1, s13, v1\nv_mul_u32_u24 v1, 9216, v1\ns_mul_i32 s14, s%d, 768\nv_add_u32 v3, s14, v1" % sS)
    t1 = lambda pr: [touch("buffer_load_dword v4, v3, %s, 0 offen offset:%d" % (S(SA), 128*pr))] if OPT["pf"] & 2 else []
    def dma(st, i):
        pre = []
        if st < 18:
            dv, sr = DV, SA
            if i == 0: pre.append("s_add_u32 s%d, s%d, %d" % (sOFF, sK + st % 3, (st//3)*128))
        else:
            dv, sr = DV2, SB; sl, c = divmod(st-18, 2)
            if i == 0:
                if c: pre.append("s_add_u32 s%d, s%d, %d" % (sOFF, sOFF, 192*1152))
                elif sl < 3: pre.append("s_movk_i32 s%d, %d" % (sOFF, (6+sl)*128))
                else: pre.append("s_lshl_b32 s%d, s%d, 7" % (sOFF, sP+sl))
        if i % 3 == 0: pre.append("s_add_u32 m0, s%d, 0x%x" % (sWB, (st % 6)*24576 + i*1024))
        return pre, I("buffer_load_dwordx4 v%d, %s, s%d offen offset:%d lds" % (dv+i, S(sr), sOFF, (i % 3)*1024), "st%d" % st)
    def dmas(st, i0, i1):
        o = []
        for i in range(i0, i1):
            a, b = dma(st, i); o += a + [b]
        return o
    p("v_and_b32 v1, 15, v0\nv_lshrrev_b32 v1, 2, v1\nv_lshl_add_u32 v1, v6, 3, v1\nv_lshlrev_b32 v1, 7, v1")
    p("v_and_b32 v2, 3, v0\nv_lshl_add_u32 v1, v2, 3, v1\nv_bfe_u32 v2, v0, 4, 1\nv_lshl_add_u32 v1, v2, 5, v1\nv_bfe_u32 v2, v0, 3, 1\nv_lshl_add_u32 v%d, v2, 6, v1" % RB)
    p("v_xor_b32 v%d, 64, v%d" % (RB+1, RB))
    for k in range(2, 6): p("v_add_u32 v%d, 0x%x, v%d" % (RB+k, (k//2)*49152, RB+(k & 1)))
    p("s_and_b32 s27, s%d, 1\ns_lshl_b32 s68, s%d, 3" % (sS, sM))
    stats(p, xso, dmas(0, 0, 6), -LOG2E, AH, {OPT.get('t0', 2): t1(0), OPT.get('t1', 6): t1(1)})
    announce(p, "L_ffn_an", [68])
    RB2 = 112; V8 = 118; PK = 120; HL = 136; RS = 152; BASE = 168; LB = 184
    vPA, vFL, vFV, vL, vTW, vTR, vO = 232, 233, 13, 14, 234, 235, 236
    SB2 = 240
    XD = LB
    def hreg(U):
        if U == 0: return "v", HV
        if U >= 10: return "v", HL + 8*(U-10)
        return "a", HA + 8*(U-1)
    mf = []; fr = []
    for pr in range(6):
        for j in range(36):
            for u in range(2):
                n = len(mf); c = V(ACC[pr & 1][u], 16)
                mf.append("v_mfma_f32_32x32x16_bf16 %s, %s, %s, %s" % (c, A(FB+4*(n % NFB)), V(XN+4*j), c if j else "0"))
                fr.append((3*pr + j//12, j % 12, u))
    for dp in range(9):
        order = [(kk, u) for kk in range(24) for u in range(2)] if dp < 8 else [(kk, u) for u in range(2) for kk in range(24)]
        for kk, u in order:
            k, b = hreg(kk//2); hb = "%s[%d:%d]" % (k, b+4*(kk & 1), b+4*(kk & 1)+3)
            n = len(mf); c = V(ACC[dp & 1][u], 16)
            mf.append("v_mfma_f32_32x32x16_bf16 %s, %s, %s, %s" % (c, A(FB+4*(n % NFB)), hb, c if kk else "0"))
            fr.append((18 + 2*dp + kk//12, kk % 12, u))
    G = Gaps(mf); N = len(mf)
    def rd(n):
        st, jj, u = fr[n]; sl = st % 6; fb = FB+4*(n % NFB)
        base = (RB if st < 18 else RB2) + 2*(sl//2) + u
        off = (sl & 1)*24576 + jj*2048; dq = 512 if st < 18 else 1024
        return ["ds_read_b64_tr_b16 %s, v%d offset:%d" % (A(fb, 2), base, off), "ds_read_b64_tr_b16 %s, v%d offset:%d" % (A(fb+2, 2), base, off+dq)]
    avoid = {}
    for st in range(36):
        g = 24*st
        if st+1 < 36:
            G.add(g, "pre", WaitV("st%d" % (st+1))); G.add(g, "pre", "s_barrier")
        if st+5 < 36:
            for i in range(6):
                gg = g + 1 + 4*i
                a, b = dma(st+5, i)
                G.add(gg, "pre", a); G.add(gg, "vm", b); avoid[gg] = 1 if gg < 480 else 2
    for pr in range(2, 6):
        g = 2 + 48*(pr-2); G.add(g, "vm", t1(pr)); avoid[g] = 1
    if OPT["pf"] & 1:
        for t in range(6):
            g = OPT.get("pf0", 122) + OPT.get("pfd", 36)*t
            G.add(g, "pre", "s_movk_i32 s11, %d" % (t*18*128)); G.add(g, "vm", touch("buffer_load_dword v4, v31, %s, s11 offen" % S(SB))); avoid[g] = 1
    g2 = lambda sl: 432 + 48*sl
    flag = lambda n: [I("buffer_store_dword v7, v7, %s, 0 offen offset:%d sc1" % (S(SWS), 128*(n & 7)), "fl%d" % n)]
    def setst(sl): return "s_mov_b32 s%d, 0x%x" % (sST, (6+sl)*DS()) if sl < 3 else "s_mul_i32 s%d, s%d, %d" % (sST, sP+sl, DS())
    late = []
    for sl in range(8):
        g0 = g2(sl+1)
        G.add(g0+2, "pre", setst(sl))
        for f in range(4):
            gg = g0 + 6 + 4*f
            G.add(gg, "vm", pstore(PK+4*f, V8 + f//2, 1024*(f & 1)), "ps%d" % sl); avoid[gg] = 0
            late.append((cvts(ACC[sl & 1][f//2], f & 1, PK+4*f), gg-3, gg))
        if sl >= 2:
            gf = g0 + OPT.get("gf", 38)
            G.add(gf, "pre", WaitV("ps%d" % sl)); G.add(gf, "vm", flag(sl+1)); avoid[gf] = 1
    g8 = g2(8)
    G.add(g8+24, "pre", setst(8))
    for h in range(2):
        gg = g8 + 28 + 2*h
        G.add(gg, "vm", pstore(PK+4*h, V8, 1024*h), "ps8"); avoid[gg] = 0
        late.append((cvts(ACC[0][0], h, PK+4*h), gg-1, gg))
    pc = Poll("L_fc", "global_load_dword v%d, v%d, s[42:43] sc1" % (vFL, vFV), "v_cmp_gt_u32 vcc, 16, v%d" % vFL, "exec")
    G.add(g2(1)+20, "va", "v_mov_b32 v%d, s68" % vFV)
    pc.place(G, g2(1)+23, g2(2)+22); avoid[g2(1)+23] = 1
    polls = [Poll("L_fp%d" % b, "buffer_load_dword v%d, v%d, %s, 0 offen sc1" % (vFL, vPA, S(SWS)), "v_cmp_eq_u32 vcc, 0, v%d" % vFL, "s[%d:%d]" % (MK[b], MK[b]+1)) for b in range(5)]
    def srcloads(dl, dst):
        return ["s_lshl_b32 s11, s%d, 13" % (sP+7-dl)], [pload(dst+8*a+4*h, vL+a, 11, 1024*h) for a in range(2) for h in range(2)]
    PG = OPT.get("pg", 12); sums = []; SB_ = 2
    def free(g, n):
        o = []
        while len(o) < n:
            if g not in avoid: o.append(g)
            g += 1
        return o
    bufs = [LB, LB+16, LB, 16]
    NB = 4 if g2(8)+PG+28 < N else 3
    for b in range(NB):
        g0 = free(g2(5+b)+PG, 1)[0]
        polls[b].place(G, g0, g0+20); avoid[g0] = 1
        dst = bufs[b]
        pre, lds = srcloads(b, dst)
        gl = free(g0+22, 12 if b == SB_ else 4)
        G.add(gl[0], "pre", pre)
        for g_, x in zip(gl, lds): G.add(g_, "vm", x, "ld%d" % b); avoid[g_] = 2
        items = sum((psum(RS+8*h, dst+8*a+4*h, T, first=(b == 0 and a == 0)) for a in range(2) for h in range(2)), [])
        if b < 2: sums.append(("ld%d" % b, items, g0+46, g0+46+40))
        if b == SB_:
            for a2 in range(2):
                G.add(gl[4+4*a2], "pre", "s_mov_b32 s11, %d" % ((12+2*a2)*4096))
                for a in range(2):
                    for h in range(2):
                        g_ = gl[4+4*a2+2*a+h]; d_ = (LB+32 if a2 == 0 else SB2)+8*a+4*h
                        G.add(g_, "vm", pload(d_, vL+a, 11, 1024*h), "lds%d" % a2); avoid[g_] = 2
            if g0+46+24 <= N:
                sums.append(("ld2", items, g0+46, min(N, g0+46+38))); tail_bufs = [LB+32, SB2]
            else: tail_bufs = [LB, LB+32, SB2]
    if NB == 4: tail_bufs.append(16)
    else: G.add(N-8, "vm", polls[3].load())
    for tg, it, a, b in sums: G.add(a, "pre", WaitV(tg))
    gb = free(g2(1)+26, 5)
    for q in range(4):
        G.add(gb[q], "pre", "s_movk_i32 s11, %d" % (q*8*1152))
        G.add(gb[q], "vm", "buffer_load_dwordx2 %s, v%d, %s, s11 offen" % (V(XD+2*q, 2), vO+1, S(SX)), "xb"); avoid[gb[q]] = 2
    G.add(gb[4], "vm", "global_load_dwordx2 %s, v%d, s[32:33]" % (V(XD+8, 2), vO+2), "xb"); avoid[gb[4]] = 2
    G.add(g2(1)+22, "ds", "ds_write_b64 v%d, v[10:11]" % vTW); avoid[g2(1)+22] = 0
    for q in range(4): G.add(g2(1)+40+q, "ds", "ds_read_b64 %s, v%d offset:%d" % (V(XD+16+2*q, 2), vTR, 64*q))
    G.add(g2(2)+26, "pre", WaitV("xb"))
    pro, first, last = place_reads(G, N, rd, 7, avoid, 3, 4, NFB)
    for n in range(N): assert fr[n][0] == 0 or first[n] >= 24*(fr[n][0]-1), n
    for it, a, b in late: G.spread(it, a, b)
    K0 = 24
    G.spread(sum((center(j, T + 4*(j & 1)) for j in range(K0, 36)), []), 0, 68)
    G.add(362, "pre", ["s_xor_b32 s13, s27, 1", "s_lshl_b32 s12, s13, 6"])
    G.add(366, "pre", ["s_lshl_b32 s13, s13, 11", "s_lshl_b32 s14, s%d, 12" % sS, "s_add_u32 s14, s14, s13"])
    G.spread(["v_lshlrev_b32 v1, 9, v6"] + sum((["v_sub_u32 v%d, v%d, v1" % (RB2+k, RB+k), "v_xor_b32 v%d, s12, v%d" % (RB2+k, RB2+k)] for k in range(6)), [])
             + ["v_add_u32 v%d, s14, v8" % V8, "v_xor_b32 v%d, 0x800, v%d" % (V8+1, V8)], 368, 410)
    def silu(pr):
        o = []
        for u in range(2):
            k, b = hreg(2*pr+u); ac = ACC[pr & 1][u]
            for g4 in range(4):
                t = T + 4*(g4 & 1); z = ac+4*g4
                ex = ["v_exp_f32 v%d, v%d" % (t+q, z+q) for q in range(4)]
                ad = ["v_add_f32 v%d, 1.0, v%d" % (t+q, t+q) for q in range(4)]
                rc = ["v_rcp_f32 v%d, v%d" % (t+q, t+q) for q in range(4)]
                mu = ["v_mul_f32 v%d, v%d, v%d" % (t+q, z+q, t+q) for q in range(4)]
                if k == "v": cv = [["v_cvt_pk_bf16_f32 v%d, v%d, v%d" % (b+2*g4+q, t+2*q, t+2*q+1)] for q in range(2)]
                else: cv = [["v_cvt_pk_bf16_f32 v%d, v%d, v%d" % (t+2*q, t+2*q, t+2*q+1), "v_accvgpr_write_b32 a%d, v%d" % (b+2*g4+q, t+2*q)] for q in range(2)]
                o.append((ex, ad, rc, mu, cv))
        r = []
        for i in range(len(o)+1):
            cur = o[i] if i < len(o) else None; prv = o[i-1] if i else None
            tail = []
            if prv: tail = prv[3][:2] + prv[4][0][:1] + prv[3][2:] + prv[4][0][1:] + prv[4][1]
            if cur:
                ex, ad, rc = cur[0], cur[1], cur[2]
                seq = [ex[0], None, ex[1], ad[0], None, ex[2], ad[1], None, ex[3], ad[2], None, rc[0], ad[3], None, rc[1], None, rc[2], None, rc[3], None]
            else: seq = []
            for x in seq:
                if x is None:
                    if tail: r.append(tail.pop(0))
                else: r.append(x)
            r += tail
        return r
    for pr in range(5): G.spread(silu(pr), 72*(pr+1)+3, 72*(pr+2)-1)
    G.spread(silu(5), 432+3, 432+38)
    G.add(g2(0)+38, "pre", ["s_lshl_b32 s12, s%d, 8" % sW, "s_add_u32 s12, s12, 0x%x" % XA])
    G.add(g2(0)+39, "pre", ["s_lshl_b32 s13, s46, 5", "s_lshl_b32 s14, s%d, 6" % sS])
    G.spread(["v_mov_b32 v10, v9", "v_mov_b32 v11, v12", "v_and_b32 v1, 31, v5", "v_lshl_add_u32 v%d, v1, 3, s12" % vTW, "v_lshrrev_b32 v1, 3, v0", "v_lshl_add_u32 v%d, v1, 3, s12" % vTR,
              "v_and_b32 v2, 7, v0", "v_lshl_add_u32 v%d, v2, 3, s14" % (vO+2), "v_add_u32 v1, s13, v1", "v_mul_u32_u24 v1, 1152, v1", "v_add_u32 v%d, v1, v%d" % (vO+1, vO+2),
              "v_lshlrev_b32 v%d, 1, v%d" % (vO, vO+1)], g2(0)+40, g2(1)+20)
    G.add(g2(2)+0, "pre", ["s_mul_i32 s12, s%d, %d" % (sP+8, DS()), "s_lshl_b32 s13, s27, 11"])
    G.add(g2(2)+2, "pre", ["s_add_u32 s12, s12, s13", "s_mul_i32 s13, s46, %d" % (16*FS)])
    G.add(g2(2)+4, "pre", ["s_add_u32 s13, s13, 0x%x" % FLAGS, "s_add_u32 s14, s%d, 5" % (sP+8)])
    G.spread(["v_add_u32 v%d, s12, v8" % vL, "v_add_u32 v%d, 0x1000, v%d" % (vL+1, vL),
              "v_lshrrev_b32 v2, 1, v0", "v_sub_u32 v2, s14, v2", "v_add_u32 v3, -6, v2", "v_min_u32 v2, v2, v3",
              "v_add_u32 v1, 4, v2", "v_min_u32 v2, 4, v2", "v_mov_b32 v3, s14", "v_add_u32 v3, -4, v3", "v_cmp_gt_u32 vcc, 12, v0",
              "v_cndmask_b32 v1, v3, v1, vcc", "v_cndmask_b32 v2, %d, v2, vcc" % SB_, "v_cmp_gt_u32 vcc, 16, v0", "v_cndmask_b32 v2, 9, v2, vcc",
              "v_cmp_ne_u32 vcc, s%d, v0" % sS, "v_cndmask_b32 v2, 9, v2, vcc", "v_mul_u32_u24 v3, %d, v0" % FS, "v_and_b32 v1, 7, v1", "v_lshl_add_u32 v1, v1, 7, v3", "v_add_u32 v%d, s13, v1" % vPA]
             + ["v_cmp_eq_u32 s[%d:%d], %d, v2" % (MK[b], MK[b]+1, b) for b in range(5)], g2(2)+5, g2(2)+22)
    G.spread(unpack(XD+12, XD+9) + unpack(XD+10, XD+8) + sum((baseterm(BASE+2*q, XD+q, XD+10+2*(q & 1), XD+16+2*(q//2), T+2*(q & 1)) for q in range(8)), []), g2(2)+26, g2(4)+30)
    G.add(g2(4)+30, "pre", ["s_lshl_b32 s12, s%d, 12" % sW])
    G.spread(["v_and_b32 v1, 31, v5", "v_and_b32 v2, 7, v5", "v_xor_b32 v2, v2, v6", "v_lshlrev_b32 v2, 4, v2", "v_lshl_add_u32 v1, v1, 7, v2", "v_add_u32 v%d, s12, v1" % vTW,
              "v_lshrrev_b32 v1, 3, v0", "v_xor_b32 v2, v1, v0", "v_and_b32 v2, 7, v2", "v_lshlrev_b32 v2, 4, v2", "v_lshl_add_u32 v2, v1, 7, v2", "v_add_u32 v%d, s12, v2" % vTR]
             + ["v_xor_b32 v%d, %d, v%d" % (vO+a, 32*a, vTW) for a in (1, 2, 3)], g2(4)+31, g2(5)+4)
    for tg, it, a, b in sums: G.spread(it, a, b)
    for j in range(K0):
        p(center(j, T + 4*(j & 1), pk=True)); p(dmas(1 + j//6, j % 6, j % 6 + 1))
    p(WaitV("st0")); p("s_barrier"); p(pro); p(WaitL("f3"))
    gstamp(G, 0, 2); gstamp(G, 72, 3); gstamp(G, 432, 4)
    for sl in range(9): gstamp(G, g2(sl), 1+sl, 1)
    G.emit(p); stamp(p, 10, 1)
    report("ffn", G, 48)
    stamp(p, 5)
    p(WaitV("ps8")); p(flag(9))
    if NB == 3:
        polls[3].check(p); pre, lds = srcloads(3, 16); p(pre); p(lds, "ld3"); tail_bufs.append(16)
    p("s_mov_b32 s12, 0x3f80\ns_mov_b32 s13, 0x3f800000\ns_xor_b32 s14, s%d, 1\ns_lshl_b32 s14, s14, 12\nv_mov_b32 v1, 0x%x" % (sS, f2u(-1/LOG2E)))
    for r in range(16): p("v_add_f32 v%d, v%d, v%d" % (RS+r, RS+r, ACC[0][1]+r))
    for k, d_ in enumerate(tail_bufs):
        if k == OPT.get("tp", 2): p(polls[4].load())
        for a in range(2):
            for h in range(2): p(psum(RS+8*h, d_+8*a+4*h, T, dot=True))
    polls[4].check(p)
    stamp(p, 6)
    pre, lds = srcloads(4, LB); p(pre); p(lds, "ld4")
    p([pload(LB+16+4*h, vL, 14, 1024*h) for h in range(2)], "ld5")
    for a in range(3):
        for h in range(2): p(psum(RS+8*h, LB+8*a+4*h, T, dot=True))
    stamp(p, 7)
    for a in range(4): p("ds_write_b128 v%d, %s" % (vO+a if a else vTW, V(RS+4*a)))
    for i in range(4): p("ds_read_b128 %s, v%d offset:%d" % (V(LB+4*i), vTR, 1024*i))
    for i in range(4):
        for r in range(4): p("v_fma_f32 v%d, v%d, v1, v%d" % (LB+4*i+r, LB+4*i+r, BASE+4*i+r))
        p("s_mov_b32 s11, %d\nbuffer_store_dwordx4 %s, v%d, %s, s11 offen%s" % (i*8*2304, V(LB+4*i), vO, S(SC), OPT["outflav"]))
    stamp(p, 8)
    stamp_flush(p, 9, 0)
    p("s_endpgm")
    for x in [pc] + polls: p(Reset()); p(x.spin())

def cmul(d, a, b, t):
    return ["v_pk_mul_f32 %s, %s, %s op_sel:[1,1] op_sel_hi:[0,1] neg_lo:[1,0]" % (V(t, 2), V(a, 2), V(b, 2)),
            "v_pk_fma_f32 %s, %s, %s, %s op_sel_hi:[1,0,1]" % (V(d, 2), V(a, 2), V(b, 2), V(t, 2))]
def cfma(d, a, h, u):
    return ["v_pk_fma_f32 %s, %s, %s, %s op_sel_hi:[1,0,1]" % (V(d, 2), V(h, 2), V(a, 2), V(u, 2)),
            "v_pk_fma_f32 %s, %s, %s, %s op_sel:[1,1,0] op_sel_hi:[0,1,1] neg_lo:[1,0,0]" % (V(d, 2), V(h, 2), V(a, 2), V(d, 2))]
def ssm(p):
    DV, DV2, RB, TS, T, PR, E, U = 13, 22, 32, 44, 52, 64, 84, 96
    PAR = XA; EX = XA + 4096
    FB = 144; NFB = 18; AH = 3
    XP = [2, 5, 8, 0, 3, 6, 1, 4, 7] if OPT["rot"] else list(range(9))
    p("L_ssm:")
    xso = lambda c: ["s_movk_i32 s%d, %d" % (sOFF, 128*XP[c])]
    for c in range(AH): xissue(p, c, xso(c))
    srd(p, SWS, 44, 0x10000000)
    p("buffer_store_dwordx4 v[10:13], v44, %s, 0 offen sc1" % S(SWS), tag="clr")
    p("s_cmp_ge_u32 s%d, 2\ns_cselect_b32 s%d, s24, s22\ns_cselect_b32 s%d, s25, s23\ns_cselect_b32 s%d, s28, s26\ns_cselect_b32 s%d, s29, s27" % (sW, SA, SA+1, SB, SB+1))
    p("s_mov_b32 s%d, %d\ns_mov_b32 s%d, 0x20000\ns_mov_b32 s%d, %d\ns_mov_b32 s%d, 0x20000" % (SA+2, 576*1152, SA+3, SB+2, 576*1152, SB+3))
    p("s_lshl_b32 s34, s%d, 7\ns_lshl_b32 s35, s%d, 4\ns_add_u32 s35, s35, 512" % (sG, sG))
    p("s_lshl_b32 s14, s%d, 6\nv_add_u32 v1, s14, v0\nv_min_u32 v1, 143, v1\nv_lshlrev_b32 v%d, 3, v1" % (sW, TS+6))
    p("s_sub_u32 s13, s35, 128\ns_cmp_ge_u32 s%d, 2\ns_cselect_b32 s13, s13, s34\nv_add_u32 v1, s13, v1\nv_lshlrev_b32 v1, 1, v1" % sW)
    p("global_load_ushort v%d, v1, s[18:19]\nglobal_load_ushort v%d, v1, s[20:21]\nglobal_load_ushort v%d, v1, s[30:31]" % (T, T+1, T+2), tag="par")
    p("s_lshl_b32 s14, s%d, 15\ns_add_u32 s14, s14, 0x%x\ns_add_u32 s%d, s44, s14\ns_addc_u32 s%d, s45, 0\ns_mov_b32 s%d, 32768\ns_mov_b32 s%d, 0x20000" % (sG, CARRY, SC, SC+1, SC+2, SC+3))
    p("s_lshl_b32 s36, s%d, 11\nv_mov_b32 v2, -1\nv_mov_b32 v3, -1\nbuffer_store_dwordx2 v[2:3], v%d, %s, s36 offen sc1" % (sM, TS+6, S(SC)), tag="clr")
    p("v_lshrrev_b32 v1, 3, v0\nv_mul_u32_u24 v1, 1152, v1\nv_and_b32 v2, 7, v0\nv_lshrrev_b32 v3, 4, v0\nv_xor_b32 v2, v2, v3")
    p("s_and_b32 s37, s%d, 1\ns_lshl_b32 s14, s37, 2\nv_xor_b32 v2, s14, v2\nv_lshl_add_u32 v3, v2, 4, v1\nv_xor_b32 v2, 4, v2\nv_lshl_add_u32 v2, v2, 4, v1" % sW)
    p("s_mul_i32 s14, s%d, 72\ns_add_u32 s14, s14, s34\ns_cmp_ge_u32 s%d, 2\ns_cselect_b32 s13, 160, 0\ns_sub_i32 s14, s14, s13" % (sW, sW))
    p("s_cmp_eq_u32 s%d, 2\ns_cselect_b32 s12, s35, s14\ns_sub_u32 s13, s35, 56\ns_cmp_eq_u32 s%d, 1\ns_cselect_b32 s13, s13, s14" % (sW, sW))
    for i in range(9):
        p("s_add_i32 s11, s%d, %d\ns_mul_i32 s11, s11, 1152\nv_add_u32 v%d, s11, v%d" % (12 if i < 2 else (13 if i > 6 else 14), 8*i, DV+i, 2 if i & 1 else 3))
    p("s_mul_i32 s%d, s%d, 9216" % (sWB, sW))
    p("s_mul_i32 s14, s37, %d\ns_lshl_b32 s13, s34, 1\ns_add_u32 s13, s13, s14\ns_lshl_b32 s12, s35, 1\ns_add_u32 s12, s12, s14" % (32*1152))
    p("v_lshrrev_b32 v1, 4, v0\nv_and_b32 v2, 15, v0\nv_xor_b32 v2, v2, v1\nv_mul_u32_u24 v1, 1152, v1\nv_add_u32 v1, s13, v1")
    for i in range(4):
        p("v_xor_b32 v3, %d, v2\nv_lshl_add_u32 v3, v3, 4, v1\nv_add_u32 v%d, %d, v3\nv_add_u32 v%d, %d, v3" % (4*i, DV2+i, 4*i*1152, DV2+4+i, (16+4*i)*1152))
    p("v_lshrrev_b32 v1, 1, v0\nv_mul_u32_u24 v1, 1152, v1\nv_lshrrev_b32 v2, 4, v0\nv_xor_b32 v2, v2, v0\nv_and_b32 v2, 1, v2\nv_lshl_add_u32 v1, v2, 4, v1\nv_add_u32 v%d, s12, v1" % (DV2+8))
    p("s_and_b32 s13, s%d, 7\ns_lshl_b32 s13, s13, 1\ns_add_u32 s13, s13, s37\ns_mul_i32 s13, s13, 36\ns_lshl_b32 s14, s34, 1" % sM)
    p("v_min_u32 v1, 17, v0\nv_mul_u32_u24 v2, 86, v1\nv_lshrrev_b32 v2, 8, v2\nv_mul_u32_u24 v3, 3, v2\nv_sub_u32 v1, v1, v3\nv_add_u32 v2, s13, v2\nv_mul_u32_u24 v2, 1152, v2")
    p("v_cmp_eq_u32 vcc, 2, v1\nv_lshl_add_u32 v1, v1, 7, s14\nv_mov_b32 v3, 0x400\nv_cndmask_b32 v1, v1, v3, vcc\nv_add_u32 v31, v1, v2")
    p("s_lshr_b32 s13, s13, 2\nv_min_u32 v1, 26, v0\nv_mul_u32_u24 v2, 57, v1\nv_lshrrev_b32 v2, 9, v2\nv_mul_u32_u24 v3, 9, v2\nv_sub_u32 v1, v1, v3\nv_add_u32 v1, s13, v1")
    p("s_sub_u32 s14, s35, 128\nv_mov_b32 v3, s14\nv_mov_b32 v51, s34\nv_cmp_gt_u32 vcc, 128, v1\nv_cndmask_b32 v3, v3, v51, vcc\nv_add_u32 v1, v1, v3\nv_mul_u32_u24 v1, 1152, v1\nv_mul_u32_u24 v2, 384, v2\nv_add_u32 v51, v1, v2")
    tb = lambda k: [touch("buffer_load_dword v4, v51, %s, 0 offen offset:%d" % (S(SA), 128*k))] if OPT["pf"] & 2 else []
    p("s_lshl_b32 s68, s%d, 3\ns_lshl_b32 s38, s%d, 4\ns_add_u32 s38, s38, 128" % (sM, sG))
    def dma(st, i):
        pre = []
        if st < 9: so = XP[st]*128; dv, sr = DV, SA
        else: so = (st-9)*64*1152; dv, sr = DV2, SB
        if i == 0: pre.append("s_mov_b32 s%d, 0x%x" % (sOFF, so))
        pre.append("s_add_u32 m0, s%d, 0x%x" % (sWB, (st % 4)*36864 + i*1024))
        return pre, I("buffer_load_dwordx4 v%d, %s, s%d offen lds" % (dv+i, S(sr), sOFF), "st%d" % st)
    def dmas(st, i0, i1):
        o = []
        for i in range(i0, i1):
            a, b = dma(st, i); o += a + [b]
        return o
    stats(p, xso, dmas(0, 0, 9), 1.0, AH, {OPT.get('t0', 2): tb(2), OPT.get('t1', 6): tb(0)})
    announce(p, "L_ssm_an", [38, 68])
    for jj in range(4): p("v_mov_b32 v%d, v%d" % (RB+4+jj, RB+jj))
    lr, li, dt = T, T+1, T+2
    P0 = PR
    par = ("v_lshlrev_b32 v%d, 16, v%d\nv_lshlrev_b32 v%d, 16, v%d\nv_lshlrev_b32 v%d, 16, v%d\n" % (lr, lr, li, li, dt, dt) +
      "v_mul_f32 v%d, 0x%x, v%d\nv_exp_f32 v%d, v%d\nv_cvt_pk_bf16_f32 v%d, v%d, v%d\nv_and_b32 v%d, 0xffff0000, v%d\n" % (dt, f2u(LOG2E), dt, dt, dt, dt, dt, dt, dt, dt) +
      "v_mul_f32 v1, v%d, v%d\nv_mul_f32 v2, v%d, v%d\nv_mul_f32 v1, 0x%x, v1\nv_mul_f32 v2, 0.15915494, v2\nv_exp_f32 v1, v1\nv_fract_f32 v2, v2\n" % (dt, lr, dt, li, f2u(LOG2E)) +
      "v_cos_f32 v3, v2\nv_sin_f32 v2, v2\nv_mul_f32 v%d, v1, v3\nv_mul_f32 v%d, v1, v2\n" % (P0, P0+1) +
      "v_mul_f32 v1, v%d, v%d\nv_fmac_f32 v1, v%d, v%d\nv_rcp_f32 v1, v1\nv_add_f32 v2, -1.0, v%d\nv_mul_f32 v1, 0x%x, v1\n" % (lr, lr, li, li, P0, f2u(-2*LOG2E)) +
      "v_mul_f32 v3, v2, v%d\nv_fmac_f32 v3, v%d, v%d\nv_mul_f32 v%d, v%d, v%d\nv_fma_f32 v%d, -v2, v%d, v%d\n" % (lr, P0+1, li, dt, P0+1, lr, dt, li, dt) +
      "v_mul_f32 v%d, v3, v1\nv_mul_f32 v%d, v%d, v1\nv_mov_b32 v%d, v%d\nv_mov_b32 v%d, v%d\n" % (P0+2, P0+3, dt, TS+4, P0+2, TS+5, P0+3) +
      "v_lshlrev_b32 v3, 1, v%d\nv_add_u32 v3, 0x%x, v3" % (TS+6, PAR)).split("\n")
    def csq(d, a): return ["v_mul_f32 v1, v%d, v%d" % (a+1, a+1), "v_mul_f32 v2, v%d, v%d" % (a, a+1), "v_fma_f32 v%d, v%d, v%d, -v1" % (d, a, a), "v_add_f32 v%d, v2, v2" % (d+1)]
    par2 = csq(TS, P0) + csq(TS, TS) + csq(TS, TS) + csq(TS, TS) + csq(TS+2, TS) + csq(TS+2, TS+2) + csq(TS+2, TS+2)
    TO = [0, 5, 1, 6, 2, 7, 3, 8, 4]
    mf = []; fr = []
    for j, t in [(j, t) for j in range(32) for t in range(9)] + [(j, t) for t in TO for j in range(32, 36)]:
        n = len(mf); c = A(16*t, 16)
        mf.append("v_mfma_f32_32x32x16_bf16 %s, %s, %s, %s" % (c, V(XN+4*j), A(FB+4*(n % NFB)), c if j else "0")); fr.append((j, t))
    G = Gaps(mf)
    L = 10; PS = 3
    def rd(n):
        j, t = fr[n]
        base = RB + (j & 3) + (0 if j >= 32 else 4)
        return ["ds_read_b128 %s, v%d offset:%d" % (A(FB+4*(n % NFB)), base, t*4096)]
    gate = lambda n: 36*(n//36) - L + PS
    def ring(G, st0, nst, last):
        left = []
        for k in range(nst):
            st = st0+k; g = 36*(k+1) - L + PS
            if st+1 <= last:
                G.add(g, "pre", WaitL("f%d" % (36*k+35))); G.add(g, "pre", WaitV("st%d" % (st+1))); G.add(g, "pre", "s_barrier")
            if st+4 <= last:
                for i in range(9):
                    a, b = dma(st+4, i); gg = g+1+3*i
                    if gg < len(G.mf): G.add(gg, "pre", a); G.add(gg, "vm", b)
                    else: left += a + [b]
        return left
    for i in range(18):
        a, b = dma(2 + i//9, i % 9); gg = 1 + (3*i)//2; G.add(gg, "pre", a); G.add(gg, "vm", b)
    left = ring(G, 0, 9, 17)
    G.add(28, "vm", tb(1))
    if OPT["pf"] & 1:
        for t in range(6):
            g = 94 + 36*(t//2) + 3*(t & 1)
            G.add(g, "pre", "s_mov_b32 s11, %d" % (t*6*1152)); G.add(g, "vm", touch("buffer_load_dword v4, v31, %s, s11 offen" % S(SB)))
    pc0 = Poll("L_sc0", "global_load_dword v41, v40, s[42:43] sc1", "v_cmp_gt_u32 vcc, 16, v41", "exec")
    G.add(200, "va", ["v_mov_b32 v40, s38", "v_mov_b32 v41, s68", "v_cmp_gt_u32 vcc, 32, v0"]); G.add(201, "va", "v_cndmask_b32 v40, v40, v41, vcc")
    pc0.place(G, 206, 242)
    G.add(41, "ds", "ds_write_b128 v3, %s" % V(P0))
    G.add(268, "va", ["v_and_b32 v1, 31, v0", "v_lshlrev_b32 v2, 4, v1", "v_add_u32 v2, 0x%x, v2" % PAR])
    for k in range(5): G.add(270+k, "ds", "ds_read_b128 %s, v2 offset:%d" % (V(PR+4*k), 512*k))
    G.add(270, "pre", "s_lshl_b32 s14, s%d, 1" % sW)
    G.add(276, "va", ["v_add_u32 v3, s14, v6", "v_mul_u32_u24 v3, 1280, v3"]); G.add(277, "va", ["v_lshl_add_u32 v3, v1, 3, v3", "v_add_u32 v31, 0x%x, v3" % EX, "v_add_u32 v51, 0x%x, v%d" % (EX, TS+6)])
    pro, first, last = place_reads(G, 324, rd, L, {}, 2, 4, NFB, gate)
    for st in range(7):
        for jj in range(4):
            g = max(0, last[36*st+9*jj+8]) + 2; assert g < first[36*st+36+9*jj]
            G.add(g, "va", "v_add_u32 v%d, 0x%x, v%d" % (RB+4+jj, ((st+1) % 4)*36864, RB+jj))
    K0 = OPT.get("sk0", 5)
    G.spread(par, 0, 40); G.spread(par2, 42, 80)
    for j in range(K0, 36): G.spread(center(j, T + 4 + 4*(j & 1)), (j-K0)*282//(36-K0), (j-K0+1)*282//(36-K0))
    def ard(t):
        k, c = (t, 0) if t < 4 else ((t-5, 1) if t > 4 else (4, 0))
        o = ["v_accvgpr_read_b32 v%d, a%d" % (U+32*k+2*r+c, 16*t+r) for r in range(16)]
        if t == 4: o += ["v_accvgpr_read_b32 v%d, a%d" % (U+128+2*r+1, 64+r) for r in range(16)]
        return o
    for n in range(7): G.spread(ard(TO[n]), 288+4*n+6, min(324, 288+4*n+10))
    for j in range(K0):
        p(center(j, T+4+4*(j & 1), pk=True)); p(dmas(1, 2*j, min(9, 2*j+2)))
    p(WaitV("st0")); p("s_barrier"); p(pro); p(WaitL("f3"))
    gstamp(G, 0, 2)
    G.emit(p); report("ssm1", G, 36)
    p(ard(8)); p(left); p(ard(4))
    stamp(p, 3)
    for r in range(16): p("v_permlane16_swap_b32 v%d, v%d" % (U+128+2*r, U+128+2*r+1))
    for t in range(1, 16):
        seqs = []
        for k in range(5):
            d = (E if t & 1 else T) + 2*k
            h = U+32*k if t == 1 else (T if t & 1 else E) + 2*k
            seqs.append(cfma(d, PR+4*k, h, U+32*k+2*t))
        for q in range(2):
            for s_ in seqs: p(s_[q])
    for k in range(5): p("ds_write_b64 v31, %s offset:%d" % (V(E+2*k, 2), 256*k))
    p("s_waitcnt lgkmcnt(0)\ns_barrier")
    es = [T, T+2, T+4, T+6, T+8, T+10, E, E+2]
    p("s_cmp_eq_u32 s%d, 3\ns_cbranch_scc1 L_ssm_s1" % sW)
    for g in range(8): p("ds_read_b64 %s, v51 offset:%d" % (V(es[g], 2), 1280*g))
    cur = es[0]
    for g in range(1, 8):
        d = E+4 + 2*(g & 1); p(cfma(d, TS, cur, es[g])); cur = d
    p("v_min_u32 v%d, -2, v%d\nv_min_u32 v%d, -2, v%d" % (cur, cur, cur+1, cur+1))
    p("buffer_store_dwordx2 %s, v%d, %s, s36 offen sc1" % (V(cur, 2), TS+6, S(SC)))
    p("L_ssm_s1:")
    stamp(p, 4)
    def coef(k, tmp):
        for t in range(0, 16, len(tmp)):
            sq = [cmul(U+32*k+2*(t+q), U+32*k+2*(t+q), PR+4*k+2, tmp[q]) for q in range(len(tmp))]
            for q in range(2): p([x[q] for x in sq])
    coef(0, [14, 16, 18, 20]); coef(1, [14, 16, 18, 20]); coef(2, [14, 16, 18, 20])
    cr = [14, 16, 18, 20, 32, 34, 36, 38, 40, 42, 10, 2, PR+2, PR+6, PR+10]
    def cload():
        p("v_add_u32 v1, s14, v%d" % (TS+6))
        for t in range(15): p("buffer_load_dwordx2 %s, v1, %s, 0 offen sc1\nv_add_u32 v1, 2048, v1" % (V(cr[t], 2), S(SC)))
    p("s_sub_u32 s14, s36, %d\ns_cmp_eq_u32 s%d, 3\ns_cbranch_scc1 L_ssm_s1b" % (15*2048, sW))
    cload()
    p("L_ssm_s1b:")
    coef(3, [E+4, E+6, E+8, E+10]); coef(4, [E+4, E+6, E+8, E+10])
    p("s_cmp_eq_u32 s%d, 3\ns_cbranch_scc1 L_ssm_s2\ns_branch L_ssm_p2\nL_ssm_p1:" % sW)
    p(Reset()); cload()
    p("L_ssm_p2:\ns_waitcnt vmcnt(0)\nv_max_u32 v1, v%d, v%d" % (cr[0], cr[0]+1))
    for t in range(1, 15): p("v_max3_u32 v1, v1, v%d, v%d" % (cr[t], cr[t]+1))
    p("v_cmp_eq_u32 vcc, -1, v1\ns_add_u32 s69, s69, 1\ns_cmp_lt_u32 s69, 0x40000\ns_cselect_b64 s[12:13], -1, 0\ns_and_b64 vcc, vcc, s[12:13]\ns_cbranch_scc1 L_ssm_p1")
    cur = cr[0]
    for t in range(1, 15):
        d = E+4 + 2*(t & 1); p(cfma(d, TS+2, cur, cr[t])); cur = d
    for g in range(8):
        nx = []
        if g < 7:
            d = E+4 + (2 if cur == E+4 else 0); nx = cfma(d, TS, cur, es[g])
        cm = cmul(14+2*(g & 1), cur, TS+4, 18)
        p([x for pair in zip(nx, cm) for x in pair] if nx else cm)
        p("ds_write_b64 v51, %s offset:%d" % (V(14+2*(g & 1), 2), 1280*g))
        cur = d
    p("L_ssm_s2:\ns_waitcnt vmcnt(0) lgkmcnt(0)\ns_barrier")
    stamp(p, 5)
    for k in range(5): p("ds_read_b64 %s, v31 offset:%d" % (V(E+2*k, 2), 256*k))
    p("s_lshl_b32 s14, s%d, 12\ns_add_u32 s14, s14, 0x%x" % (sW, XA))
    p("v_and_b32 v1, 31, v0\nv_bfe_u32 v2, v0, 1, 2\nv_lshlrev_b32 v3, 1, v6\nv_xor_b32 v2, v2, v3\nv_lshlrev_b32 v1, 6, v1\nv_lshl_add_u32 v1, v2, 4, v1\nv_add_u32 v14, s14, v1\nv_xor_b32 v15, 16, v14")
    p("v_bfe_u32 v1, v0, 2, 2\nv_lshl_add_u32 v1, v6, 3, v1\nv_lshlrev_b32 v1, 6, v1\nv_and_b32 v2, 1, v0\nv_lshlrev_b32 v2, 1, v2\nv_bfe_u32 v3, v0, 4, 1\nv_add_u32 v2, v2, v3")
    p("v_bfe_u32 v3, v0, 3, 1\nv_xor_b32 v2, v2, v3\nv_lshl_add_u32 v1, v2, 4, v1\nv_bfe_u32 v3, v0, 1, 1\nv_lshl_add_u32 v1, v3, 3, v1\nv_add_u32 v16, s14, v1\nv_xor_b32 v17, 32, v16\nv_add_u32 v17, 256, v17")
    p("s_waitcnt lgkmcnt(0)\ns_barrier")
    HS = 0
    for t in range(16):
        sq = [cfma(U+32*k+2*t, PR+4*k, E+2*k if t == 0 else U+32*k+2*t-2, U+32*k+2*t) for k in range(5)]
        for q in range(2): p([x[q] for x in sq])
    RC = 40
    rcs = ["v_and_b32 v1, 31, v0", "v_and_b32 v2, 15, v0", "v_xor_b32 v2, v2, v6", "v_lshlrev_b32 v3, 8, v1", "v_add_u32 v3, 0x%x, v3" % 36864]
    for j in range(8): rcs += ["v_xor_b32 v%d, %d, v2" % (RC+j, 2*j), "v_lshl_add_u32 v%d, v%d, 4, v3" % (RC+j, RC+j)]
    rcs += ["v_bfe_u32 v2, v0, 3, 1", "v_xor_b32 v2, v2, v6", "v_lshlrev_b32 v2, 4, v2", "v_lshl_add_u32 v2, v1, 5, v2", "v_add_u32 v%d, 0x%x, v2" % (RC+8, 36864+8192)]
    for k in range(5):
        b = U+32*k; c = T if k & 1 else 32
        for hh in range(2):
            for q in range(4*hh, 4*hh+4): p("v_cvt_pk_bf16_f32 v%d, -v%d, -v%d" % (c+q, b+4*q+1, b+4*q+3))
            p("ds_write_b128 v%d, %s offset:2048" % (14+hh, V(c+4*hh)))
        for hh in range(2):
            for q in range(4*hh, 4*hh+4): p("v_cvt_pk_bf16_f32 v%d, v%d, v%d" % (b+q, b+4*q, b+4*q+2))
            p("ds_write_b128 v%d, %s" % (14+hh, V(b+4*hh)))
        for comp in range(2):
            for jl in range(2 if k < 4 else 1):
                h = HS + comp*36 + 4*(2*k+jl)
                p("ds_read_b64_tr_b16 %s, v16 offset:%d\nds_read_b64_tr_b16 %s, v17 offset:%d" % (A(h, 2), comp*2048+jl*1024, A(h+2, 2), comp*2048+jl*1024))
        if k == 0: p(rcs)
    ACC = [[96, 112], [128, 144]]; PK = 64; RS = 160; LB = 208; LB2 = None; BASE = 184
    V8 = 13; vPA, vFL, vL = 14, 15, 17
    XD = LB
    mf = []
    for dp in range(9):
        for kk in range(18):
            for u in range(2):
                n = len(mf); c = V(ACC[dp & 1][u], 16)
                mf.append("v_mfma_f32_32x32x16_bf16 %s, %s, %s, %s" % (c, A(FB+4*(n % NFB)), A(HS+4*kk), c if kk else "0"))
    G = Gaps(mf)
    def rd2(n):
        dp, r = divmod(n, 36); kk, u = divmod(r, 2); comp, j = divmod(kk, 9)
        return ["ds_read_b128 %s, v%d offset:%d" % (A(FB+4*(n % NFB)), RC+j, comp*18432+u*9216)]
    avoid = {}; late = []
    assert not ring(G, 9, 9, 17)
    flag = lambda n: [I("buffer_store_dword v7, v7, %s, 0 offen offset:%d sc1" % (S(SWS), 128*(n & 7)), "fl%d" % n)]
    for dp in range(1, 9):
        g = 36*dp
        G.add(g+2, "pre", "s_mov_b32 s%d, 0x%x" % (sST, (dp-1)*DS()))
        for f in range(4):
            gg = g+7+3*f
            G.add(gg, "vm", pstore(PK+4*f, V8, 1024*f), "ps%d" % (dp-1)); avoid[gg] = 0
            late.append((cvts(ACC[(dp-1) & 1][f//2], f & 1, PK+4*f), gg-2, gg))
        if dp <= 6:
            gf = g+37
            G.add(gf, "pre", WaitV("ps%d" % (dp-1))); G.add(gf, "vm", flag(dp))
    G.add(0, "pre", ["s_lshl_b32 s12, s%d, 12" % sS, "s_mul_i32 s13, s46, %d" % (16*FS), "s_add_u32 s13, s13, 0x%x" % FLAGS])
    G.add(1, "pre", ["s_mul_i32 s39, s%d, 96" % sG, "s_add_u32 s39, s39, 768", "s_mul_i32 s14, s%d, 3" % sG])
    su = ["v_add_u32 v%d, s12, v8" % V8, "v_cmp_gt_u32 vcc, 12, v0", "v_mul_u32_u24 v1, %d, v0" % FS, "v_mov_b32 v3, 3", "v_cndmask_b32 v2, 7, v3, vcc", "v_lshl_add_u32 v1, v2, 7, v1", "v_add_u32 v%d, s13, v1" % vPA]
    for i in range(3):
        su += ["v_mov_b32 v1, s14", "v_add_u32 v1, %d, v1" % (24+i), "v_lshrrev_b32 v2, 2, v1", "v_mul_u32_u24 v2, %d, v2" % DS(), "v_and_b32 v1, 3, v1", "v_lshl_add_u32 v1, v1, 10, v2", "v_add_u32 v%d, v1, v8" % (vL+i)]
    G.add(4, "pre", ["s_mov_b64 s[94:95], 0xfff", "s_mov_b64 s[96:97], 0xf000"])
    pa = Poll("L_sa", "buffer_load_dword v%d, v%d, %s, 0 offen sc1" % (vFL, vPA, S(SWS)), "v_cmp_eq_u32 vcc, 0, v%d" % vFL, "s[94:95]")
    pb = Poll("L_sb", "buffer_load_dword v%d, v%d, %s, 0 offen sc1" % (vFL, vPA, S(SWS)), "v_cmp_eq_u32 vcc, 0, v%d" % vFL, "s[96:97]")
    pa.place(G, 272, 296)
    def sload(s_): return ["s_mov_b32 s11, %d" % (s_*4096)], [I(pload(sbuf(s_)+4*i, vL+i, 11, 0), "ld%d" % s_) for i in range(3)]
    sbuf = lambda s_: [LB, LB+12, LB+24, LB+36, 128, 140, 20, 32][s_ % 8]
    for s_ in range(4):
        a, b = sload(s_); g = 306 + 4*s_
        G.add(g, "pre", a)
        for i in range(3): G.add(g+i, "vm", b[i])
    vTW, vTR, vO, vS = 80, 81, 84, 87
    G.add(20, "pre", ["s_mul_i32 s12, s%d, 6656" % sW, "s_add_u32 s12, s12, %d" % (2*36864)])
    G.add(21, "pre", ["s_lshl_b32 s13, s46, 5", "s_lshl_b32 s14, s%d, 12" % sW, "s_add_u32 s14, s14, 0x%x" % XA])
    tr = ["v_mov_b32 v10, v9", "v_mov_b32 v11, v12", "v_and_b32 v1, 31, v5", "v_lshl_add_u32 v16, v1, 3, s14", "v_mul_u32_u24 v1, 208, v1", "v_lshl_add_u32 v1, v6, 4, v1", "v_add_u32 v%d, s12, v1" % vTW]
    for i in range(3):
        tr += ["v_add_u32 v1, %d, v0" % (64*i), "v_mul_u32_u24 v2, 171, v1", "v_lshrrev_b32 v2, 11, v2", "v_mul_u32_u24 v3, 12, v2", "v_sub_u32 v1, v1, v3",
               "v_lshl_add_u32 v%d, v2, 3, s14" % (vS+i), "v_lshl_add_u32 v%d, v1, 3, s39" % (93+i), "v_lshlrev_b32 v1, 4, v1",
               "v_mul_u32_u24 v3, 208, v2", "v_add3_u32 v%d, v3, v1, s12" % (vTR+i), "v_add_u32 v2, s13, v2", "v_mul_u32_u24 v2, 1152, v2", "v_add_u32 v%d, v2, v%d" % (90+i, 93+i),
               "v_lshlrev_b32 v%d, 1, v%d" % (vO+i, 90+i)]
    assert all((n*171) >> 11 == n//12 for n in range(192))
    G.add(56, "ds", "ds_write_b64 v16, v[10:11]"); avoid[56] = 0
    G.add(57, "pre", "s_movk_i32 s11, %d" % (16*1152))
    for q in range(6):
        G.add(57+q, "vm", "buffer_load_dwordx2 %s, v%d, %s, %s offen" % (V(XD+2*q, 2), 90 + q % 3, S(SX), "s11" if q >= 3 else "0"), "xb")
        G.add(58+q, "ds", "ds_read_b64 %s, v%d offset:%d" % (V(XD+12+2*q, 2), vS + q % 3, 128*(q//3)))
    for q in range(3): G.add(92+q, "vm", "global_load_dwordx2 %s, v%d, s[32:33]" % (V(XD+24+2*q, 2), 93+q), "xb")
    G.add(128, "pre", WaitV("xb"))
    pro, first, last = place_reads(G, 324, rd2, L, avoid, 2, 4, NFB, gate)
    for dp in range(8):
        for j in range(9):
            g = last[36*dp+19+2*j] + 1
            if not avoid.get(g, 1): g += 1
            assert g < first[36*dp+36+2*j]
            G.add(g, "va", "v_add_u32 v%d, 0x%x, v%d" % (RC+j, (36864 if (dp+10) % 4 else -3*36864) & 0xffffffff, RC+j))
    for it, a, b in late: G.spread(it, a, b)
    G.spread(su, 2, 19); G.spread(tr, 22, 55)
    G.spread(sum((unpack(XD+30+2*q, XD+24+q) for q in range(6)), []) +
             sum((baseterm(BASE+2*q, XD+q, XD+30+4*((q//2) % 3)+2*(q & 1), XD+12+2*(q//2), T+2*(q & 1)) for q in range(12)), []), 128, 290)
    G.spread(["v_mov_b32 v%d, 0" % (RS+r) for r in range(24)], 290, 322)
    p("s_waitcnt lgkmcnt(0)")
    stamp(p, 6)
    p(pro); p(WaitL("f3"))
    for sl in range(9): gstamp(G, 36*sl, 1+sl, 1)
    G.emit(p); report("ssm2", G, 36); stamp(p, 10, 1)
    stamp(p, 7)
    p("s_mov_b32 s%d, 0x%x" % (sST, 8*DS()))
    for f in range(4): p(cvts(ACC[0][f//2], f & 1, PK+4*f)); p(pstore(PK+4*f, V8, 1024*f), "ps8")
    for s_ in range(4, 8): p(sload(s_))
    srd(p, SC, 40, 2048*2304)
    p("s_mov_b32 s12, 0x3f80\ns_mov_b32 s13, 0x3f800000\nv_mov_b32 v1, 0x%x" % f2u(-1/LOG2E))
    def ssum(s_):
        for i in range(3): p(psum(RS+8*i, sbuf(s_)+4*i, T, dot=True))
    for s_ in range(4): ssum(s_)
    p(WaitV("ps8")); p(flag(7))
    for s_ in range(8, 12): p(sload(s_))
    for s_ in range(4, 8): ssum(s_)
    p(pb.load()); ssum(8); ssum(9); pb.check(p)
    stamp(p, 8)
    for s_ in range(12, 16): p(sload(s_))
    for s_ in range(10, 16): ssum(s_)
    for a in range(6): p("ds_write_b128 v%d, %s offset:%d" % (vTW, V(RS+4*a), 32*a))
    for i in range(6): p("ds_read_b128 %s, v%d offset:%d" % (V(LB+4*i), vTR + i % 3, (i//3)*16*208))
    p("s_mov_b32 s11, %d" % (16*2304))
    for i in range(6):
        for r in range(4): p("v_fma_f32 v%d, v%d, v1, v%d" % (LB+4*i+r, LB+4*i+r, BASE+4*i+r))
        p("buffer_store_dwordx4 %s, v%d, %s, %s offen%s" % (V(LB+4*i), vO + i % 3, S(SC), "s11" if i >= 3 else "0", OPT["outflav"]))
    stamp(p, 9)
    stamp_flush(p, 10, 1)
    p("s_endpgm")
    for x in (pc0, pa, pb): p(Reset()); p(x.spin())

def main_kernel():
    p = Prog(); entry(p); ffn(p); t1 = p.finish()
    if OPT.get("verbose"): print("ffn", p.stats, file=sys.stderr)
    q = Prog(); entry(q); ssm(q); t2 = q.finish()
    if OPT.get("verbose"): print("ssm", q.stats, file=sys.stderr)
    return t1 + t2[t2.index("L_ssm:"):] + "L_code_end:\n    s_endpgm\n"

def build():
    K1 = NAME + "_kernel"
    ex = "  .amdhsa_float_denorm_mode_32 3\n"
    s = "; @launch grid=(256,1,1) block=(256,1,1) lds=163840\n"
    s += ".amdgcn_target \"amdgcn-amd-amdhsa--gfx950\"\n.text\n" + head(K1) + main_kernel()
    s += ".section .rodata,\"a\"\n.p2align 6\n" + kd(K1, 512, 256, 102, ex)
    return s
if __name__ == "__main__":
    out = sys.argv[1]
    for a in sys.argv[2:]:
        k, v = a.split("="); OPT[k] = int(v) if v.lstrip("-").isdigit() else (" " + v if v else "")
    open(out, "w").write(build())
```
